```python
import torch

def _softmax(x, axis=-1):
    return torch.softmax(x, dim=axis)
def _gelu(x):
    return torch.nn.functional.gelu(x, approximate="tanh")
def _silu(x):
    return torch.nn.functional.silu(x)
def _sigmoid(x):
    return torch.sigmoid(x)
def _layernorm(x, axis=-1, eps=1e-5):
    m = x.mean(dim=axis, keepdim=True)
    v = x.var(dim=axis, keepdim=True, unbiased=False)
    return (x - m) / torch.sqrt(v + eps)
def _scatter_add(tgt, idx, src, axis=0):
    return tgt.clone().index_add_(axis, idx, src)
def _segment_sum(src, seg, n):
    out = torch.zeros((n,) + src.shape[1:], dtype=src.dtype)
    return out.index_add_(0, seg, src)
def _pad(x, pw):
    flat = tuple(v for pair in reversed(pw) for v in pair)
    return torch.nn.functional.pad(x, flat)

kernel_name = 'gated_mix__ssm_conv_h3__dense_activation_mish__prompt'

def setup_inputs():

    _w = (lambda a: (lambda t: t.to(torch.bfloat16) if t.is_floating_point() else t)(torch.as_tensor(a)))
    def _A_setup():
        B, S, D = 1, 2048, 512
        ks = 4
        return {
            "q": _w((lambda *s: torch.randn(*s, dtype=torch.bfloat16) * 0.05)(B, S, D)),
            "k": _w((lambda *s: torch.randn(*s, dtype=torch.bfloat16) * 0.2)(B, S, D)),
            "v": _w((lambda *s: torch.randn(*s, dtype=torch.bfloat16) * 0.2)(B, S, D)),
            "shift_k": _w((lambda *s: torch.randn(*s, dtype=torch.bfloat16) * 0.2)(D, ks) * 0.5),
            "ssm_k": _w((lambda *s: torch.randn(*s, dtype=torch.bfloat16) * 0.8)(D, S) * (1.0 / S ** 0.5)),
            "ssm_D": _w((lambda *s: torch.randn(*s, dtype=torch.bfloat16) * 0.2)(D)),
        }
    _A_in = _A_setup()

    def _B_setup():
        B, S, D, F = 1, 2048, 512, 1376
        return {
            "x": _w((lambda *s: torch.randn(*s, dtype=torch.bfloat16) * 0.05)(B, S, D)),
            "w1": _w((lambda *s: torch.randn(*s, dtype=torch.bfloat16) * 3.2)(D, F) * (D ** -0.5)),
            "b1": _w((lambda *s: torch.randn(*s, dtype=torch.bfloat16) * 0.05)(F)),
            "w2": _w((lambda *s: torch.randn(*s, dtype=torch.bfloat16) * 0.05)(F, D) * (F ** -0.5)),
        }
    _B_in = _B_setup()

    return {
        "A_q": _A_in["q"],
        "A_k": _A_in["k"],
        "A_v": _A_in["v"],
        "A_shift_k": _A_in["shift_k"],
        "A_ssm_k": _A_in["ssm_k"],
        "A_ssm_D": _A_in["ssm_D"],
        "B_x": _B_in["x"],
        "B_w1": _B_in["w1"],
        "B_b1": _B_in["b1"],
        "B_w2": _B_in["w2"],
        "gate_w": _w((lambda *s: torch.randn(*s, dtype=torch.bfloat16) * 0.05)(512) * 16.0),
    }

def reference(A_q, A_k, A_v, A_shift_k, A_ssm_k, A_ssm_D, B_x, B_w1, B_b1, B_w2, gate_w):
    def _A_ref(q, k, v, shift_k, ssm_k, ssm_D):
        B, S, D = q.shape
        ks = shift_k.shape[-1]
        k_pad = _pad(k, ((0, 0), (ks - 1, 0), (0, 0)))
        k_shift = torch.zeros_like(k)
        for t in range(ks):
            k_shift = k_shift + k_pad[:, t:t + S, :] * shift_k[:, ks - 1 - t][None, None, :]
        kv = k_shift * v
        L = 2 * S
        kv_pad = _pad(kv, ((0, 0), (0, S), (0, 0)))
        kf_pad = _pad(ssm_k, ((0, 0), (0, S)))
        kv_f = (lambda x, axes=(-2,-1): torch.fft.rfft2(x.float(), dim=axes))(kv_pad[:, None, :, :], axes=(1, 2))
        kf_f = (lambda x, axes=(-2,-1): torch.fft.rfft2(x.float(), dim=axes))(kf_pad[:, None, :], axes=(1, 2))
        kf_f = (lambda x, *d: x.permute(*d))(kf_f, 1, 2, 0)
        y_f = kv_f * kf_f[None, :, :, :]
        y = (lambda x, s, axes=(-2,-1): torch.fft.irfft2(x, s=s, dim=axes).to(torch.bfloat16))(y_f, (1, L), axes=(1, 2))[:, 0, :S, :]
        y = y + kv * ssm_D[None, None, :]
        return q * y

    def _B_ref(x, w1, b1, w2):
        h = torch.einsum("bsd,df->bsf", x, w1) + b1
        sp = torch.log1p(torch.exp(-torch.abs(h))) + torch.where(h > 0, h, torch.zeros_like(h))
        act = h * torch.tanh(sp)
        return torch.einsum("bsf,fd->bsd", act, w2)

    x = A_q
    g = _sigmoid((x * gate_w).sum(-1, keepdims=True))
    a = _A_ref(x, A_k, A_v, A_shift_k, A_ssm_k, A_ssm_D)
    b = _B_ref(x, B_w1, B_b1, B_w2)
    return g * a + (1 - g) * b
```

```python
import sys

NAME = "gated_mix__ssm_conv_h3__dense_activation_mish__prompt"
S, D, F, FP = 2048, 512, 1376, 1408
WS_KVR, WS_W1T, WS_W2T, WS_ACT, WS_Y2T, WS_G = 0x0, 0x200000, 0x400000, 0x600000, 0xC00000, 0xE00000
KA = dict(q=0, k=8, v=16, shift_k=24, ssm_k=32, ssm_D=40, x=48, w1=56, b1=64, w2=72, gate_w=80, out=88, dbg=96, ws=104)


class K:
    def __init__(self):
        self.L = []

    def __call__(self, s):
        for line in s.strip("\n").split("\n"):
            self.L.append("    " + line.strip())

    def lbl(self, s):
        self.L.append(s + ":")

    def text(self):
        return "\n".join(self.L) + "\n"


def srd(k, sreg, ptr_sreg, nbytes, off=0):
    if off:
        k(f"s_add_u32 s{sreg}, s{ptr_sreg}, {off:#x}")
        k(f"s_addc_u32 s{sreg+1}, s{ptr_sreg+1}, 0")
    else:
        k(f"s_mov_b32 s{sreg}, s{ptr_sreg}")
        k(f"s_mov_b32 s{sreg+1}, s{ptr_sreg+1}")
    k(f"s_mov_b32 s{sreg+2}, {nbytes:#x}")
    k(f"s_mov_b32 s{sreg+3}, 0x00020000")


def kernel_header(name):
    return f""".globl {name}
.p2align 8
.type {name},@function
{name}:
"""


def kernel_desc(name, vgprs, sgprs=102, accum=None):
    if accum is None:
        accum = (vgprs + 3) // 4 * 4
    return f""".section .rodata,"a"
.p2align 6
.amdhsa_kernel {name}
  .amdhsa_next_free_vgpr {vgprs}
  .amdhsa_next_free_sgpr {sgprs}
  .amdhsa_accum_offset {accum}
  .amdhsa_group_segment_fixed_size 0
  .amdhsa_kernarg_size 112
  .amdhsa_user_sgpr_count 2
  .amdhsa_user_sgpr_kernarg_segment_ptr 1
  .amdhsa_system_sgpr_workgroup_id_x 1
.end_amdhsa_kernel
.text
"""


PREP_KV_WGS = 256
PREP_GATE_WGS = 512
PREP_W1_WGS = 8 * 43
PREP_W2_WGS = 44 * 8
PREP_WGS = PREP_KV_WGS + PREP_GATE_WGS + PREP_W1_WGS + PREP_W2_WGS


def gen_transpose_role(k, tag, src_srd, src_row_bytes, dst_srd, dst_row_bytes, sr0, sc0, R, C):
    cpr = C // 8
    assert R * cpr == 256
    RS = 2 * R + 16
    lg = cpr.bit_length() - 1
    k(f"v_lshrrev_b32 v1, {lg}, v0")
    k(f"v_and_b32 v2, {cpr-1}, v0         ; chunk")
    k(f"v_add_u32 v3, s{sr0}, v1")
    k(f"s_mov_b32 s40, {src_row_bytes}")
    k(f"v_mul_lo_u32 v3, v3, s40")
    k(f"v_lshlrev_b32 v4, 4, v2")
    k(f"s_lshl_b32 s41, s{sc0}, 1")
    k(f"v_add3_u32 v3, v3, v4, s41")
    k(f"buffer_load_dwordx4 v[8:11], v3, s[{src_srd}:{src_srd+3}], 0 offen")
    k(f"v_mul_u32_u24 v5, {8*RS}, v2")
    k(f"v_lshl_add_u32 v5, v1, 1, v5")
    k("s_waitcnt vmcnt(0)")
    for e in range(8):
        op = "ds_write_b16" if e % 2 == 0 else "ds_write_b16_d16_hi"
        k(f"{op} v5, v{8 + e//2} offset:{e*RS}")
    k("s_waitcnt lgkmcnt(0)")
    k("s_barrier")
    cpd = R // 8
    lg2 = cpd.bit_length() - 1
    k(f"v_lshrrev_b32 v1, {lg2}, v0")
    k(f"v_and_b32 v2, {cpd-1}, v0")
    k(f"v_mul_u32_u24 v5, {RS}, v1")
    k(f"v_lshl_add_u32 v5, v2, 4, v5")
    k("ds_read_b128 v[8:11], v5")
    k(f"v_add_u32 v3, s{sc0}, v1")
    k(f"s_mov_b32 s40, {dst_row_bytes}")
    k(f"v_mul_lo_u32 v3, v3, s40")
    k(f"v_lshlrev_b32 v4, 4, v2")
    k(f"s_lshl_b32 s41, s{sr0}, 1")
    k(f"v_add3_u32 v3, v3, v4, s41")
    k("s_waitcnt lgkmcnt(0)")
    k(f"buffer_store_dwordx4 v[8:11], v3, s[{dst_srd}:{dst_srd+3}], 0 offen")
    k("s_endpgm")


def gen_prep():
    k = K()
    k(f"s_cmp_ge_u32 s2, {PREP_WGS}")
    k("s_cbranch_scc1 L_prep_exit")
    k(f"s_load_dwordx2 s[6:7], s[0:1], {KA['ws']}")
    k(f"s_cmp_ge_u32 s2, {PREP_KV_WGS}")
    k("s_cbranch_scc1 L_prep_gate")
    k(f"s_load_dwordx2 s[4:5], s[0:1], {KA['k']}")
    k(f"s_load_dwordx2 s[24:25], s[0:1], {KA['v']}")
    k(f"s_load_dwordx2 s[26:27], s[0:1], {KA['shift_k']}")
    k("s_lshr_b32 s3, s2, 3")
    k("s_lshl_b32 s3, s3, 6           ; s0 = 64*sblk")
    k("s_and_b32 s28, s2, 7")
    k("s_lshl_b32 s28, s28, 6         ; d0 = 64*dblk")
    k("v_lshrrev_b32 v1, 3, v0        ; r")
    k("v_and_b32 v2, 7, v0            ; c")
    k("v_lshlrev_b32 v3, 4, v2")
    k("s_lshl_b32 s29, s28, 1")
    k("v_add_u32 v3, s29, v3          ; colb = (d0+8c)*2")
    k("s_waitcnt lgkmcnt(0)")
    srd(k, 8, 4, S * D * 2)
    srd(k, 12, 24, S * D * 2)
    srd(k, 16, 26, D * 8)
    srd(k, 20, 6, D * S * 2, WS_KVR)
    k("v_lshlrev_b32 v4, 2, v3")
    for i in range(4):
        k(f"buffer_load_dwordx4 v[{16+4*i}:{19+4*i}], v4, s[16:19], 0 offen offset:{16*i}")
    RS = 144
    k(f"v_mul_u32_u24 v9, {8*RS}, v2")
    k("s_waitcnt vmcnt(0)")
    for e in range(8):
        k(f"v_lshlrev_b32 v{32+4*e+0}, 16, v{16+2*e}")
        k(f"v_and_b32 v{32+4*e+1}, 0xffff0000, v{16+2*e}")
        k(f"v_lshlrev_b32 v{32+4*e+2}, 16, v{17+2*e}")
        k(f"v_and_b32 v{32+4*e+3}, 0xffff0000, v{17+2*e}")
    for p in range(2):
        k(f"v_add_u32 v5, s3, v1")
        k(f"v_add_u32 v5, {32*p - 3}, v5" if 32 * p - 3 < 0 else f"v_add_u32 v5, {32*p-3}, v5")
        k("v_lshlrev_b32 v5, 10, v5")
        k("v_add_u32 v5, v5, v3")
        k("v_add_u32 v6, 0x400, v5")
        k("v_add_u32 v7, 0x800, v5")
        k("v_add_u32 v8, 0xc00, v5")
        k("buffer_load_dwordx4 v[64:67], v5, s[8:11], 0 offen")
        k("buffer_load_dwordx4 v[68:71], v6, s[8:11], 0 offen")
        k("buffer_load_dwordx4 v[72:75], v7, s[8:11], 0 offen")
        k("buffer_load_dwordx4 v[76:79], v8, s[8:11], 0 offen")
        k("buffer_load_dwordx4 v[80:83], v8, s[12:15], 0 offen")
        k("s_waitcnt vmcnt(0)")
        for i in range(4):
            e0, e1 = 2 * i, 2 * i + 1
            for j in range(4):
                k(f"v_lshlrev_b32 v84, 16, v{64+4*j+i}")
                k(f"v_and_b32 v85, 0xffff0000, v{64+4*j+i}")
                k(f"v_mul_f32 v84, v84, v{32+4*e0+3-j}")
                k(f"v_mul_f32 v85, v85, v{32+4*e1+3-j}")
                k("v_cvt_pk_bf16_f32 v86, v84, v85")
                if j == 0:
                    k("v_lshlrev_b32 v87, 16, v86")
                    k("v_and_b32 v88, 0xffff0000, v86")
                else:
                    k("v_lshlrev_b32 v84, 16, v86")
                    k("v_and_b32 v85, 0xffff0000, v86")
                    k("v_add_f32 v87, v87, v84")
                    k("v_add_f32 v88, v88, v85")
                    k("v_cvt_pk_bf16_f32 v86, v87, v88")
                    k("v_lshlrev_b32 v87, 16, v86")
                    k("v_and_b32 v88, 0xffff0000, v86")
            k(f"v_lshlrev_b32 v84, 16, v{80+i}")
            k(f"v_and_b32 v85, 0xffff0000, v{80+i}")
            k("v_mul_f32 v87, v87, v84")
            k("v_mul_f32 v88, v88, v85")
            k(f"v_cvt_pk_bf16_f32 v{90+i}, v87, v88")
        k(f"v_sub_u32 v10, {63-32*p}, v1")
        k("v_lshl_add_u32 v10, v10, 1, v9")
        for e in range(8):
            op = "ds_write_b16" if e % 2 == 0 else "ds_write_b16_d16_hi"
            k(f"{op} v10, v{90+e//2} offset:{e*RS}")
    k("s_waitcnt lgkmcnt(0)")
    k("s_barrier")
    k("v_lshrrev_b32 v1, 2, v0")
    k("v_and_b32 v2, 3, v0")
    k(f"v_mul_u32_u24 v5, {RS}, v1")
    k("v_lshl_add_u32 v5, v2, 5, v5")
    k("ds_read_b128 v[16:19], v5")
    k("ds_read_b128 v[20:23], v5 offset:16")
    k("v_add_u32 v3, s28, v1")
    k("v_lshlrev_b32 v3, 12, v3")
    k("v_lshl_add_u32 v3, v2, 5, v3")
    k("s_sub_u32 s29, 1984, s3")
    k("s_lshl_b32 s29, s29, 1")
    k("v_add_u32 v3, s29, v3")
    k("s_waitcnt lgkmcnt(0)")
    k("buffer_store_dwordx4 v[16:19], v3, s[20:23], 0 offen")
    k("buffer_store_dwordx4 v[20:23], v3, s[20:23], 0 offen offset:16")
    k("s_endpgm")

    k.lbl("L_prep_gate")
    k(f"s_cmp_ge_u32 s2, {PREP_KV_WGS + PREP_GATE_WGS}")
    k("s_cbranch_scc1 L_prep_w1")
    k(f"s_load_dwordx2 s[4:5], s[0:1], {KA['q']}")
    k(f"s_load_dwordx2 s[24:25], s[0:1], {KA['gate_w']}")
    k(f"s_sub_u32 s3, s2, {PREP_KV_WGS}")
    k("s_lshl_b32 s3, s3, 2")
    k("v_lshrrev_b32 v1, 6, v0        ; wave")
    k("v_and_b32 v2, 63, v0           ; lane")
    k("v_add_u32 v3, s3, v1           ; row")
    k("v_lshlrev_b32 v4, 10, v3")
    k("v_lshl_add_u32 v4, v2, 4, v4")
    k("v_lshlrev_b32 v5, 4, v2")
    k("s_waitcnt lgkmcnt(0)")
    srd(k, 8, 4, S * D * 2)
    srd(k, 12, 24, D * 2)
    srd(k, 20, 6, S * 4, WS_G)
    k("buffer_load_dwordx4 v[8:11], v4, s[8:11], 0 offen")
    k("buffer_load_dwordx4 v[12:15], v5, s[12:15], 0 offen")
    k("s_waitcnt vmcnt(0)")
    for i in range(4):
        k(f"v_lshlrev_b32 v16, 16, v{8+i}")
        k(f"v_and_b32 v17, 0xffff0000, v{8+i}")
        k(f"v_lshlrev_b32 v18, 16, v{12+i}")
        k(f"v_and_b32 v19, 0xffff0000, v{12+i}")
        k("v_mul_f32 v16, v16, v18")
        k("v_mul_f32 v17, v17, v19")
        k("v_cvt_pk_bf16_f32 v16, v16, v17")
        k("v_lshlrev_b32 v17, 16, v16")
        k("v_and_b32 v16, 0xffff0000, v16")
        if i == 0:
            k("v_add_f32 v20, v16, v17")
        else:
            k("v_add_f32 v20, v20, v17")
            k("v_add_f32 v20, v20, v16")
    k("s_nop 1")
    k("v_add_f32_dpp v20, v20, v20 quad_perm:[1,0,3,2] row_mask:0xf bank_mask:0xf")
    k("s_nop 1")
    k("v_add_f32_dpp v20, v20, v20 quad_perm:[2,3,0,1] row_mask:0xf bank_mask:0xf")
    k("s_nop 1")
    k("v_add_f32_dpp v20, v20, v20 row_half_mirror row_mask:0xf bank_mask:0xf")
    k("s_nop 1")
    k("v_add_f32_dpp v20, v20, v20 row_mirror row_mask:0xf bank_mask:0xf")
    k("s_nop 1")
    k("v_readlane_b32 s30, v20, 0")
    k("v_readlane_b32 s31, v20, 16")
    k("v_readlane_b32 s32, v20, 32")
    k("v_readlane_b32 s33, v20, 48")
    k("s_nop 3")
    k("v_mov_b32 v21, s30")
    k("v_add_f32 v21, s31, v21")
    k("v_add_f32 v21, s32, v21")
    k("v_add_f32 v21, s33, v21")
    k("v_cvt_pk_bf16_f32 v21, v21, v21")
    k("v_lshlrev_b32 v21, 16, v21")
    k("v_mul_f32 v21, 0xbfb8aa3b, v21")
    k("v_exp_f32 v21, v21")
    k("s_nop 0")
    k("v_add_f32 v21, 1.0, v21")
    k("v_rcp_f32 v21, v21")
    k("s_nop 0")
    k("v_cvt_pk_bf16_f32 v21, v21, v21")
    k("v_lshlrev_b32 v21, 16, v21")
    k("v_lshlrev_b32 v3, 2, v3")
    k("v_cmp_eq_u32 vcc, 0, v2")
    k("s_and_saveexec_b64 s[34:35], vcc")
    k("buffer_store_dword v21, v3, s[20:23], 0 offen")
    k("s_endpgm")

    k.lbl("L_prep_w1")
    k(f"s_cmp_ge_u32 s2, {PREP_KV_WGS + PREP_GATE_WGS + PREP_W1_WGS}")
    k("s_cbranch_scc1 L_prep_w2")
    k(f"s_load_dwordx2 s[4:5], s[0:1], {KA['w1']}")
    k(f"s_sub_u32 s3, s2, {PREP_KV_WGS + PREP_GATE_WGS}")
    k("s_and_b32 s28, s3, 7")
    k("s_lshl_b32 s28, s28, 6      ; k0")
    k("s_lshr_b32 s29, s3, 3")
    k("s_lshl_b32 s30, s29, 5      ; f0")
    k("s_waitcnt lgkmcnt(0)")
    srd(k, 8, 4, D * F * 2)
    srd(k, 20, 6, F * D * 2, WS_W1T)
    gen_transpose_role(k, "w1", 8, F * 2, 20, D * 2, 28, 30, 64, 32)

    k.lbl("L_prep_w2")
    k(f"s_load_dwordx2 s[4:5], s[0:1], {KA['w2']}")
    k(f"s_sub_u32 s3, s2, {PREP_KV_WGS + PREP_GATE_WGS + PREP_W1_WGS}")
    k("s_and_b32 s28, s3, 7")
    k("s_lshl_b32 s28, s28, 6      ; d0")
    k("s_lshr_b32 s29, s3, 3")
    k("s_lshl_b32 s30, s29, 5      ; f0")
    k("s_waitcnt lgkmcnt(0)")
    srd(k, 8, 4, F * D * 2)
    srd(k, 20, 6, D * FP * 2, WS_W2T)
    gen_transpose_role(k, "w2", 8, D * 2, 20, FP * 2, 30, 28, 32, 64)
    k.lbl("L_prep_exit")
    k("s_endpgm")
    return k.text()


def build(kernels):
    hdr = [f"; {NAME}: generated by dev/gen.py"]
    for (nm, body, vg, grid, block, lds) in kernels:
        hdr.append(f"; @launch kernel={nm} grid=({grid},1,1) block=({block},1,1) lds={lds}")
    out = "\n".join(hdr) + "\n"
    out += '.amdgcn_target "amdgcn-amd-amdhsa--gfx950"\n.text\n'
    for (nm, body, vg, grid, block, lds) in kernels:
        out += kernel_header(nm) + body
    for (nm, body, vg, grid, block, lds) in kernels:
        out += kernel_desc(nm, vg)
    return out


if __name__ == "__main__":
    kernels = [
        ("prep_kernel", gen_prep(), 96, PREP_WGS, 256, 16384),
    ]
    txt = build(kernels)
    path = sys.argv[1] if len(sys.argv) > 1 else f"cdna_kernels/{NAME}.s"
    open(path, "w").write(txt)
    print("wrote", path, len(txt), "bytes")
```

```python
from gen import *

CONV_WGS = 256
HSTRIDE = 4352
XOFF = 2 * HSTRIDE
CONV_LDS = XOFF + 4 * 4096

C0, C1 = 64, 80
B0, B1 = 96, 100
AP, AQ = 104, 120
VMASK = 136


def gen_conv(k, wg_sreg="s2", standalone=True):
    k(f"s_load_dwordx2 s[4:5], s[0:1], {KA['ssm_k']}")
    k(f"s_load_dwordx2 s[6:7], s[0:1], {KA['ws']}")
    k(f"s_load_dwordx2 s[24:25], s[0:1], {KA['ssm_D']}")
    k("v_lshrrev_b32 v1, 6, v0          ; wave")
    k("v_and_b32 v2, 63, v0             ; lane")
    k("v_readfirstlane_b32 s36, v1")
    k("s_lshr_b32 s37, s36, 1           ; ch")
    k("s_and_b32 s38, s36, 1            ; ks")
    k(f"s_lshl_b32 s39, {wg_sreg}, 1")
    k("s_add_u32 s40, s39, s37")
    k("v_and_b32 v3, 31, v2")
    k("v_lshrrev_b32 v4, 5, v2          ; half")
    k("s_waitcnt lgkmcnt(0)")
    srd(k, 8, 4, D * S * 2)
    srd(k, 12, 6, D * S * 2, WS_KVR)
    srd(k, 16, 6, D * S * 2, WS_Y2T)
    srd(k, 20, 24, D * 2)
    k("v_lshlrev_b32 v5, 4, v0          ; 16*t")
    k("s_lshl_b32 s41, s39, 12          ; d0*4096")
    k("v_add_u32 v6, s41, v5")
    k("buffer_load_dwordx4 v[16:19], v6, s[8:11], 0 offen")
    k("v_add_u32 v8, 0x1000, v6")
    k("buffer_load_dwordx4 v[20:23], v8, s[8:11], 0 offen")
    k("s_lshl_b32 s42, s40, 12")
    k("s_lshl_b32 s43, s38, 6")
    k("s_sub_u32 s42, s42, s43")
    k("s_add_u32 s42, s42, 4064")
    k("v_lshlrev_b32 v7, 7, v3          ; 128*n")
    k("v_sub_u32 v7, s42, v7")
    k("v_lshl_add_u32 v7, v4, 4, v7     ; + 16*half")
    k(f"buffer_load_dwordx4 v[{B0}:{B0+3}], v7, s[12:15], 0 offen")
    k("v_subrev_u32 v8, 32, v7")
    k(f"buffer_load_dwordx4 v[{B1}:{B1+3}], v8, s[12:15], 0 offen")
    k("s_lshl_b32 s44, s40, 1")
    k("v_mov_b32 v9, s44")
    k("buffer_load_ushort v10, v9, s[20:23], 0 offen")
    k("v_mov_b32 v24, 0")
    k("v_mov_b32 v25, 0")
    k("v_mov_b32 v26, 0")
    k("v_mov_b32 v27, 0")
    k("v_cmp_gt_u32 vcc, 8, v0")
    k("s_and_saveexec_b64 s[34:35], vcc")
    k("ds_write_b128 v5, v[24:27]")
    k(f"ds_write_b128 v5, v[24:27] offset:{HSTRIDE}")
    k("s_mov_b64 exec, s[34:35]")
    for i in range(32):
        k(f"v_mov_b32 v{C0+i}, 0")
    k(f"v_mov_b32 v{VMASK}, -1")
    k("v_cmp_ne_u32 vcc, 32, v2")
    k("s_nop 1")
    k(f"v_cndmask_b32 v{VMASK}, 0, v{VMASK}, vcc")
    k("s_waitcnt vmcnt(3)")
    k("ds_write_b128 v5, v[16:19] offset:128")
    k("s_waitcnt vmcnt(2)")
    k(f"ds_write_b128 v5, v[20:23] offset:{HSTRIDE+128}")
    k(f"s_mul_i32 s45, s37, {HSTRIDE}")
    k("s_add_u32 s45, s45, 66")
    k("s_sub_u32 s45, s45, s43")
    k("v_lshlrev_b32 v11, 1, v3")
    k("v_lshl_add_u32 v11, v4, 4, v11")
    k("v_add_u32 v11, s45, v11          ; A base")
    k("s_waitcnt lgkmcnt(0)")
    k("s_barrier")

    def a_loads(m, buf):
        for kk in range(2):
            for mb in range(2):
                idx = kk * 2 + mb
                off = 128 * m + 64 * mb - 32 * kk + 32
                k(f"ds_read_b128 v[{buf+4*idx}:{buf+4*idx+3}], v11 offset:{off}")

    a_loads(0, AP)
    k("s_waitcnt vmcnt(0)")
    for m in range(32):
        cur = AP if m % 2 == 0 else AQ
        nxt = AQ if m % 2 == 0 else AP
        if m < 31:
            a_loads(m + 1, nxt)
            k("s_waitcnt lgkmcnt(4)")
        else:
            k("s_waitcnt lgkmcnt(0)")
        k(f"v_mfma_f32_32x32x16_bf16 v[{C0}:{C0+15}], v[{cur}:{cur+3}], v[{B0}:{B0+3}], v[{C0}:{C0+15}]")
        k(f"v_mfma_f32_32x32x16_bf16 v[{C1}:{C1+15}], v[{cur+4}:{cur+7}], v[{B0}:{B0+3}], v[{C1}:{C1+15}]")
        k(f"v_mfma_f32_32x32x16_bf16 v[{C0}:{C0+15}], v[{cur+8}:{cur+11}], v[{B1}:{B1+3}], v[{C0}:{C0+15}]")
        k(f"v_mfma_f32_32x32x16_bf16 v[{C1}:{C1+15}], v[{cur+12}:{cur+15}], v[{B1}:{B1+3}], v[{C1}:{C1+15}]")
        if m < 31:
            for r in range(8):
                k(f"v_and_b32_dpp v{B0+r}, v{B0+r}, v{VMASK} wave_shr:1 row_mask:0xf bank_mask:0xf bound_ctrl:0")
    k("s_nop 7")
    k("s_nop 7")
    k(f"s_mul_i32 s46, s36, 4096")
    k(f"s_add_u32 s46, s46, {XOFF}")
    k("v_lshlrev_b32 v12, 4, v2")
    k("v_add_u32 v12, s46, v12")
    k("s_xor_b32 s47, s36, 1")
    k(f"s_mul_i32 s47, s47, 4096")
    k(f"s_add_u32 s47, s47, {XOFF}")
    k("v_lshlrev_b32 v13, 4, v2")
    k("v_add_u32 v13, s47, v13")
    k("s_cmp_eq_u32 s38, 0")
    k("s_cbranch_scc1 L_conv_ks0")
    for g in range(4):
        k(f"ds_write_b128 v12, v[{C0+4*g}:{C0+4*g+3}] offset:{1024*g}")
    k("s_waitcnt lgkmcnt(0)")
    for i in range(16):
        k(f"v_mov_b32 v{C0+i}, v{C1+i}")
    k("s_branch L_conv_xchg")
    k.lbl("L_conv_ks0")
    for g in range(4):
        k(f"ds_write_b128 v12, v[{C1+4*g}:{C1+4*g+3}] offset:{1024*g}")
    k("s_waitcnt lgkmcnt(0)")
    k.lbl("L_conv_xchg")
    k("s_barrier")
    for g in range(4):
        k(f"ds_read_b128 v[{C1+4*g}:{C1+4*g+3}], v13 offset:{1024*g}")
    k("s_lshl_b32 s48, s38, 6           ; 2*32*ks")
    k("v_lshlrev_b32 v14, 7, v3         ; 128*a")
    k("v_lshl_add_u32 v14, v4, 3, v14   ; + 8*half")
    k("v_add_u32 v14, s48, v14          ; 2*s_g (g=0)")
    k("s_lshl_b32 s49, s40, 12")
    k("v_add_u32 v15, s49, v14")
    k("s_add_u32 s49, s49, 4088")
    k("v_sub_u32 v14, s49, v14")
    for g in range(4):
        k(f"v_subrev_u32 v5, {16*g}, v14")
        k(f"buffer_load_dwordx2 v[{16+2*g}:{17+2*g}], v5, s[12:15], 0 offen")
    k("v_lshlrev_b32 v10, 16, v10       ; D[d] as f32")
    k("s_waitcnt lgkmcnt(0)")
    for i in range(16):
        k(f"v_add_f32 v{C0+i}, v{C0+i}, v{C1+i}")
    k("s_waitcnt vmcnt(0)")
    for g in range(4):
        c = C0 + 4 * g
        kd0, kd1 = 16 + 2 * g, 17 + 2 * g
        k(f"v_cvt_pk_bf16_f32 v24, v{c}, v{c+1}")
        k(f"v_cvt_pk_bf16_f32 v25, v{c+2}, v{c+3}")
        k(f"v_and_b32 v26, 0xffff0000, v{kd1}     ; kv[s]")
        k(f"v_lshlrev_b32 v27, 16, v{kd1}         ; kv[s+1]")
        k(f"v_and_b32 v28, 0xffff0000, v{kd0}     ; kv[s+2]")
        k(f"v_lshlrev_b32 v29, 16, v{kd0}         ; kv[s+3]")
        k("v_mul_f32 v26, v26, v10")
        k("v_mul_f32 v27, v27, v10")
        k("v_mul_f32 v28, v28, v10")
        k("v_mul_f32 v29, v29, v10")
        k("v_cvt_pk_bf16_f32 v26, v26, v27")
        k("v_cvt_pk_bf16_f32 v28, v28, v29")
        k("v_lshlrev_b32 v30, 16, v24")
        k("v_and_b32 v31, 0xffff0000, v24")
        k("v_lshlrev_b32 v32, 16, v25")
        k("v_and_b32 v33, 0xffff0000, v25")
        k("v_lshlrev_b32 v24, 16, v26")
        k("v_and_b32 v25, 0xffff0000, v26")
        k("v_lshlrev_b32 v26, 16, v28")
        k("v_and_b32 v27, 0xffff0000, v28")
        k("v_add_f32 v30, v30, v24")
        k("v_add_f32 v31, v31, v25")
        k("v_add_f32 v32, v32, v26")
        k("v_add_f32 v33, v33, v27")
        k("v_cvt_pk_bf16_f32 v30, v30, v31")
        k("v_cvt_pk_bf16_f32 v31, v32, v33")
        k(f"buffer_store_dwordx2 v[30:31], v15, s[16:19], 0 offen offset:{16*g}")
        k("s_nop 1")
    k("s_endpgm")


def gen_conv_kernel():
    k = K()
    k(f"s_cmp_ge_u32 s2, {CONV_WGS}")
    k("s_cbranch_scc1 L_conv_exit")
    gen_conv(k)
    k.lbl("L_conv_exit")
    k("s_endpgm")
    return k.text()
```

```python
from gen import *

LOG2E = 0x3fb8aa3b


class GemmCfg:
    def __init__(self, name, MT, NT, KTOT, RBW, RBA, NST, mts_per_wave, wave_split):
        self.name = name
        self.MT, self.NT, self.KTOT, self.RBW, self.RBA, self.NST = MT, NT, KTOT, RBW, RBA, NST
        self.mts = mts_per_wave
        self.wave_split = wave_split
        self.NI = (MT + NT) // 8
        self.NIW = self.NI // 4
        self.STAGE = (MT + NT) * 128
        self.NSTEP = KTOT // 64
        self.LDS = self.STAGE * NST


G1 = GemmCfg("g1", 96, 128, 512, 1024, 1024, 3, 3, 'n4')
G2 = GemmCfg("g2", 64, 64, FP, FP * 2, FP * 2, 3, 1, 'm2n2')

ACC = 64
FRAG = 16
VRA = 2
VRB = 6
VA_T = 48
VOW, VOA = 10, 11
VLANE, VWAVE = 12, 13


def gemm_mainloop(k, c, sW, sA, s_soffW, s_soffA, s_wave):
    nW = c.MT // 32
    nA = c.NT // 32
    k(f"v_and_b32 v{VLANE}, 63, v0")
    k(f"v_lshrrev_b32 v{VWAVE}, 6, v0")
    k(f"v_lshrrev_b32 v14, 3, v{VLANE}")
    k(f"v_lshl_add_u32 v14, v{VWAVE}, 3, v14")
    k(f"v_lshrrev_b32 v15, 4, v{VLANE}")
    k(f"v_lshl_add_u32 v15, v{VWAVE}, 2, v15")
    k(f"v_xor_b32 v15, v15, v{VLANE}")
    k(f"v_and_b32 v15, 7, v15")
    k(f"s_mov_b32 s60, {c.RBW}")
    k(f"v_mul_lo_u32 v{VOW}, v14, s60")
    k(f"v_lshl_add_u32 v{VOW}, v15, 4, v{VOW}")
    k(f"s_mov_b32 s60, {c.RBA}")
    k(f"v_mul_lo_u32 v{VOA}, v14, s60")
    k(f"v_lshl_add_u32 v{VOA}, v15, 4, v{VOA}")
    k(f"v_and_b32 v14, 31, v{VLANE}")
    k(f"v_lshrrev_b32 v15, 5, v{VLANE}")
    k("v_lshrrev_b32 v56, 1, v14")
    k("v_and_b32 v56, 7, v56                           ; swizzle")
    k("v_lshlrev_b32 v57, 7, v14                       ; row*128")
    for t in range(4):
        k(f"v_add_u32 v58, {2*t}, v15")
        k("v_xor_b32 v58, v58, v56")
        k(f"v_lshl_add_u32 v{VRA+t}, v58, 4, v57")
    if c.wave_split == 'n4':
        k(f"v_lshlrev_b32 v58, 12, v{VWAVE}")
        k(f"v_add_u32 v58, {c.MT*128}, v58")
        for t in range(4):
            k(f"v_add_u32 v{VRB+t}, v{VRA+t}, v58")
    else:
        k(f"v_lshrrev_b32 v58, 1, v{VWAVE}")
        k("v_lshlrev_b32 v58, 12, v58")
        k(f"v_add_u32 v58, {c.MT*128}, v58")
        for t in range(4):
            k(f"v_add_u32 v{VRB+t}, v{VRA+t}, v58")
        k(f"v_and_b32 v58, 1, v{VWAVE}")
        k("v_lshlrev_b32 v58, 12, v58")
        for t in range(4):
            k(f"v_add_u32 v{VRA+t}, v{VRA+t}, v58")
    for i in range(16 * c.mts):
        k(f"v_mov_b32 v{ACC+i}, 0")
    k(f"s_lshl_b32 s61, {s_wave}, 10")

    def dma_stage(st):
        slot = st % c.NST
        for i in range(c.NIW):
            k(f"s_add_u32 s62, s61, {slot*c.STAGE + i*4096}")
            k("s_mov_b32 m0, s62")
            if i < nW:
                k(f"buffer_load_dwordx4 v{VOW}, s[{sW}:{sW+3}], s{s_soffW+i} offen lds")
            else:
                k(f"buffer_load_dwordx4 v{VOA}, s[{sA}:{sA+3}], s{s_soffA+i-nW} offen lds")
        k(f"v_add_u32 v{VOW}, 0x80, v{VOW}")
        k(f"v_add_u32 v{VOA}, 0x80, v{VOA}")

    nfr = c.mts + 1
    def frag_reads(t, buf):
        base = FRAG + buf * nfr * 4
        for mt in range(c.mts):
            k(f"ds_read_b128 v[{base+4*mt}:{base+4*mt+3}], v{VA_T+t} offset:{mt*4096}")
        k(f"ds_read_b128 v[{base+4*c.mts}:{base+4*c.mts+3}], v{VA_T+4+t}")

    def mfmas(buf):
        base = FRAG + buf * nfr * 4
        for mt in range(c.mts):
            a = ACC + 16 * mt
            k(f"v_mfma_f32_32x32x16_bf16 v[{a}:{a+15}], v[{base+4*mt}:{base+4*mt+3}], v[{base+4*c.mts}:{base+4*c.mts+3}], v[{a}:{a+15}]")

    for st in range(min(c.NST - 1, c.NSTEP)):
        dma_stage(st)
    inflight_after0 = min(c.NST - 1, c.NSTEP) - 1
    k(f"s_waitcnt vmcnt({inflight_after0*c.NIW})")
    k("s_barrier")
    for step in range(c.NSTEP):
        slot = step % c.NST
        if step + c.NST - 1 < c.NSTEP:
            dma_stage(step + c.NST - 1)
        for t in range(4):
            k(f"v_add_u32 v{VA_T+t}, {slot*c.STAGE}, v{VRA+t}")
            k(f"v_add_u32 v{VA_T+4+t}, {slot*c.STAGE}, v{VRB+t}")
        frag_reads(0, 0)
        for t in range(4):
            if t < 3:
                frag_reads(t + 1, (t + 1) % 2)
                k(f"s_waitcnt lgkmcnt({nfr})")
            else:
                k("s_waitcnt lgkmcnt(0)")
            mfmas(t % 2)
        if step < c.NSTEP - 1:
            last_issued = min(step + c.NST - 1, c.NSTEP - 1)
            n_after = last_issued - (step + 1)
            k(f"s_waitcnt vmcnt({n_after*c.NIW})")
            k("s_barrier")


def mish4(k, a, bpair, out0, out1, t):
    k(f"v_cvt_pk_bf16_f32 v{t}, v{a}, v{a+1}")
    k(f"v_cvt_pk_bf16_f32 v{t+1}, v{a+2}, v{a+3}")
    k(f"v_lshlrev_b32 v{a}, 16, v{t}")
    k(f"v_and_b32 v{a+1}, 0xffff0000, v{t}")
    k(f"v_lshlrev_b32 v{a+2}, 16, v{t+1}")
    k(f"v_and_b32 v{a+3}, 0xffff0000, v{t+1}")
    k(f"v_lshlrev_b32 v{t}, 16, v{bpair}")
    k(f"v_and_b32 v{t+1}, 0xffff0000, v{bpair}")
    k(f"v_lshlrev_b32 v{t+2}, 16, v{bpair+1}")
    k(f"v_and_b32 v{t+3}, 0xffff0000, v{bpair+1}")
    for r in range(4):
        k(f"v_add_f32 v{a+r}, v{a+r}, v{t+r}")
    k(f"v_cvt_pk_bf16_f32 v{t}, v{a}, v{a+1}")
    k(f"v_cvt_pk_bf16_f32 v{t+1}, v{a+2}, v{a+3}")
    k(f"v_lshlrev_b32 v{a}, 16, v{t}")
    k(f"v_and_b32 v{a+1}, 0xffff0000, v{t}")
    k(f"v_lshlrev_b32 v{a+2}, 16, v{t+1}")
    k(f"v_and_b32 v{a+3}, 0xffff0000, v{t+1}")
    for r in range(4):
        k(f"v_mul_f32 v{t+r}, {LOG2E:#x}, v{a+r}")
    for r in range(4):
        k(f"v_min_f32 v{t+r}, 0x42200000, v{t+r}")
    for r in range(4):
        k(f"v_exp_f32 v{t+r}, v{t+r}")
    k("s_nop 0")
    for r in range(4):
        k(f"v_add_f32 v{t+4+r}, 2.0, v{t+r}")
    for r in range(4):
        k(f"v_mul_f32 v{t+r}, v{t+r}, v{t+4+r}")
    for r in range(4):
        k(f"v_add_f32 v{t+4+r}, 2.0, v{t+r}")
    for r in range(4):
        k(f"v_rcp_f32 v{t+4+r}, v{t+4+r}")
    k("s_nop 0")
    for r in range(4):
        k(f"v_mul_f32 v{t+r}, v{t+r}, v{t+4+r}")
    for r in range(4):
        k(f"v_mul_f32 v{t+r}, v{t+r}, v{a+r}")
    k(f"v_cvt_pk_bf16_f32 v{out0}, v{t}, v{t+1}")
    k(f"v_cvt_pk_bf16_f32 v{out1}, v{t+2}, v{t+3}")


GEMM1_WGS = 15 * 16
GEMM2_WGS = 256


def gen_gemm1(k, wg="s2"):
    c = G1
    k(f"s_load_dwordx2 s[4:5], s[0:1], {KA['q']}")
    k(f"s_load_dwordx2 s[6:7], s[0:1], {KA['ws']}")
    k(f"s_load_dwordx2 s[24:25], s[0:1], {KA['b1']}")
    k(f"s_and_b32 s26, {wg}, 15          ; sb")
    k(f"s_lshr_b32 s27, {wg}, 4          ; fb")
    k("v_lshrrev_b32 v1, 6, v0")
    k("s_nop 0")
    k("v_readfirstlane_b32 s28, v1      ; wave")
    k("s_mul_i32 s29, s27, 96           ; f0")
    k("s_lshl_b32 s30, s26, 7           ; s0")
    for i in range(3):
        k(f"s_add_u32 s{64+i}, s29, {32*i}")
        k(f"s_lshl_b32 s{64+i}, s{64+i}, 10")
    for i in range(4):
        k(f"s_add_u32 s{68+i}, s30, {32*i}")
        k(f"s_lshl_b32 s{68+i}, s{68+i}, 10")
    k("s_waitcnt lgkmcnt(0)")
    srd(k, 8, 6, F * D * 2, WS_W1T)
    srd(k, 12, 4, S * D * 2)
    srd(k, 16, 24, F * 2)
    srd(k, 20, 6, S * FP * 2, WS_ACT)
    gemm_mainloop(k, c, 8, 12, 64, 68, "s28")
    k(f"v_and_b32 v14, 31, v{VLANE}")
    k(f"v_lshrrev_b32 v15, 5, v{VLANE}")
    k(f"v_lshl_add_u32 v14, v{VWAVE}, 5, v14")
    k("v_add_u32 v14, s30, v14                 ; s")
    k(f"s_mov_b32 s60, {FP*2}")
    k("v_mul_lo_u32 v14, v14, s60")
    k("s_lshl_b32 s31, s29, 1")
    k("v_lshl_add_u32 v15, v15, 3, s31         ; (f0+4half)*2")
    k("v_add_u32 v14, v14, v15")
    for mt in range(3):
        for g in range(4):
            k(f"buffer_load_dwordx2 v[{16+8*mt+2*g}:{17+8*mt+2*g}], v15, s[16:19], 0 offen offset:{64*mt+16*g}")
    k("s_waitcnt vmcnt(0)")
    for mt in range(3):
        if mt == 2:
            k("s_cmp_eq_u32 s27, 14")
            k("s_cbranch_scc1 L_g1_done")
        for g in range(4):
            mish4(k, ACC + 16 * mt + 4 * g, 16 + 8 * mt + 2 * g, 2, 3, 40)
            k(f"buffer_store_dwordx2 v[2:3], v14, s[20:23], 0 offen offset:{64*mt+16*g}")
            k("s_nop 1")
    k.lbl("L_g1_done")
    k("s_endpgm")


def gen_gemm2(k, wg="s2"):
    c = G2
    k(f"s_load_dwordx2 s[4:5], s[0:1], {KA['q']}")
    k(f"s_load_dwordx2 s[6:7], s[0:1], {KA['ws']}")
    k(f"s_load_dwordx2 s[24:25], s[0:1], {KA['out']}")
    k(f"s_and_b32 s26, {wg}, 31          ; sb")
    k(f"s_lshr_b32 s27, {wg}, 5          ; db")
    k("v_lshrrev_b32 v1, 6, v0")
    k("s_nop 0")
    k("v_readfirstlane_b32 s28, v1      ; wave")
    k("s_lshl_b32 s29, s27, 6           ; d0")
    k("s_lshl_b32 s30, s26, 6           ; s0")
    k(f"s_mov_b32 s60, {FP*2}")
    for i in range(2):
        k(f"s_add_u32 s{64+i}, s29, {32*i}")
        k(f"s_mul_i32 s{64+i}, s{64+i}, s60")
        k(f"s_add_u32 s{68+i}, s30, {32*i}")
        k(f"s_mul_i32 s{68+i}, s{68+i}, s60")
    k("s_waitcnt lgkmcnt(0)")
    srd(k, 8, 6, D * FP * 2, WS_W2T)
    srd(k, 12, 6, S * FP * 2, WS_ACT)
    srd(k, 16, 6, D * S * 2, WS_Y2T)
    srd(k, 20, 4, S * D * 2)
    srd(k, 72, 24, S * D * 2)
    srd(k, 76, 6, S * 4, WS_G)
    gemm_mainloop(k, c, 8, 12, 64, 68, "s28")
    k(f"v_and_b32 v14, 31, v{VLANE}")
    k(f"v_lshrrev_b32 v15, 5, v{VLANE}")
    k(f"v_lshrrev_b32 v16, 1, v{VWAVE}")
    k("v_lshl_add_u32 v14, v16, 5, v14")
    k("v_add_u32 v14, s30, v14                 ; s")
    k(f"v_and_b32 v16, 1, v{VWAVE}")
    k("v_lshlrev_b32 v16, 5, v16")
    k("v_lshl_add_u32 v16, v15, 2, v16")
    k("v_add_u32 v16, s29, v16                 ; d (g=0,r=0)")
    k("v_lshlrev_b32 v17, 2, v14")
    k("buffer_load_dword v18, v17, s[76:79], 0 offen      ; g")
    k("v_lshlrev_b32 v19, 12, v16")
    k("v_lshl_add_u32 v19, v14, 1, v19")
    k("v_lshlrev_b32 v20, 10, v14")
    k("v_lshl_add_u32 v20, v16, 1, v20")
    for g in range(4):
        for r in range(4):
            k(f"s_mov_b32 s62, {(8*g+r)*4096}")
            k(f"buffer_load_ushort v{24+4*g+r}, v19, s[16:19], s62 offen")
        k(f"buffer_load_dwordx2 v[{40+2*g}:{41+2*g}], v20, s[20:23], 0 offen offset:{16*g}")
    k("s_waitcnt vmcnt(0)")
    k("v_sub_f32 v21, 1.0, v18")
    k("v_cvt_pk_bf16_f32 v21, v21, v21")
    k("v_lshlrev_b32 v21, 16, v21              ; 1-g (bf16)")
    for g in range(4):
        a = ACC + 4 * g
        k(f"v_cvt_pk_bf16_f32 v2, v{a}, v{a+1}")
        k(f"v_cvt_pk_bf16_f32 v3, v{a+2}, v{a+3}")
        k(f"v_lshlrev_b32 v{a}, 16, v2")
        k(f"v_and_b32 v{a+1}, 0xffff0000, v2")
        k(f"v_lshlrev_b32 v{a+2}, 16, v3")
        k(f"v_and_b32 v{a+3}, 0xffff0000, v3")
        for r in range(4):
            k(f"v_mul_f32 v{a+r}, v{a+r}, v21")
        k(f"v_cvt_pk_bf16_f32 v2, v{a}, v{a+1}")
        k(f"v_cvt_pk_bf16_f32 v3, v{a+2}, v{a+3}")
        k(f"v_lshlrev_b32 v{a}, 16, v2")
        k(f"v_and_b32 v{a+1}, 0xffff0000, v2")
        k(f"v_lshlrev_b32 v{a+2}, 16, v3")
        k(f"v_and_b32 v{a+3}, 0xffff0000, v3")
        y = 24 + 4 * g
        qq = 40 + 2 * g
        k(f"v_lshlrev_b32 v4, 16, v{qq}")
        k(f"v_and_b32 v5, 0xffff0000, v{qq}")
        k(f"v_lshlrev_b32 v6, 16, v{qq+1}")
        k(f"v_and_b32 v7, 0xffff0000, v{qq+1}")
        for r in range(4):
            k(f"v_lshlrev_b32 v{y+r}, 16, v{y+r}")
            k(f"v_mul_f32 v{4+r}, v{4+r}, v{y+r}")
        k("v_cvt_pk_bf16_f32 v2, v4, v5")
        k("v_cvt_pk_bf16_f32 v3, v6, v7")
        k("v_lshlrev_b32 v4, 16, v2")
        k("v_and_b32 v5, 0xffff0000, v2")
        k("v_lshlrev_b32 v6, 16, v3")
        k("v_and_b32 v7, 0xffff0000, v3")
        for r in range(4):
            k(f"v_mul_f32 v{4+r}, v{4+r}, v18")
        k("v_cvt_pk_bf16_f32 v2, v4, v5")
        k("v_cvt_pk_bf16_f32 v3, v6, v7")
        k("v_lshlrev_b32 v4, 16, v2")
        k("v_and_b32 v5, 0xffff0000, v2")
        k("v_lshlrev_b32 v6, 16, v3")
        k("v_and_b32 v7, 0xffff0000, v3")
        for r in range(4):
            k(f"v_add_f32 v{4+r}, v{4+r}, v{a+r}")
        k("v_cvt_pk_bf16_f32 v2, v4, v5")
        k("v_cvt_pk_bf16_f32 v3, v6, v7")
        k(f"buffer_store_dwordx2 v[2:3], v20, s[72:75], 0 offen offset:{16*g}")
        k("s_nop 1")
    k("s_endpgm")


def gen_gemm1_kernel():
    k = K()
    k(f"s_cmp_ge_u32 s2, {GEMM1_WGS}")
    k("s_cbranch_scc1 L_g1_exit")
    gen_gemm1(k)
    k.lbl("L_g1_exit")
    k("s_endpgm")
    return k.text()


def gen_gemm2_kernel():
    k = K()
    k(f"s_cmp_ge_u32 s2, {GEMM2_WGS}")
    k("s_cbranch_scc1 L_g2_exit")
    gen_gemm2(k)
    k.lbl("L_g2_exit")
    k("s_endpgm")
    return k.text()
```

```python
import sys
from gen import *
from gen_conv import *
from gen_gemm import *
kernels = [
    ("prep_kernel", gen_prep(), 96, PREP_WGS, 256, 16384),
    ("conv_kernel", gen_conv_kernel(), 140, CONV_WGS, 256, CONV_LDS),
    ("gemm1_kernel", gen_gemm1_kernel(), 112, GEMM1_WGS, 256, G1.LDS),
    ("gemm2_kernel", gen_gemm2_kernel(), 80, GEMM2_WGS, 256, G2.LDS),
]
txt = build(kernels)
path = sys.argv[1] if len(sys.argv) > 1 else f"cdna_kernels/{NAME}.s"
open(path, "w").write(txt)
print("wrote", path, len(txt), "bytes")
```

```python
import sys

NAME = "gated_mix__ssm_conv_h3__dense_activation_mish__prompt"
S, D, F, FP = 2048, 512, 1376, 1408
WS_KVR, WS_W1T, WS_W2T, WS_ACT, WS_Y2T, WS_G = 0x0, 0x200000, 0x400000, 0x600000, 0xC00000, 0xE00000
KA = dict(q=0, k=8, v=16, shift_k=24, ssm_k=32, ssm_D=40, x=48, w1=56, b1=64, w2=72, gate_w=80, out=88, dbg=96, ws=104)


class K:
    def __init__(self):
        self.L = []

    def __call__(self, s):
        for line in s.strip("\n").split("\n"):
            self.L.append("    " + line.strip())

    def lbl(self, s):
        self.L.append(s + ":")

    def text(self):
        return "\n".join(self.L) + "\n"


def srd(k, sreg, ptr_sreg, nbytes, off=0):
    if off:
        k(f"s_add_u32 s{sreg}, s{ptr_sreg}, {off:#x}")
        k(f"s_addc_u32 s{sreg+1}, s{ptr_sreg+1}, 0")
    else:
        k(f"s_mov_b32 s{sreg}, s{ptr_sreg}")
        k(f"s_mov_b32 s{sreg+1}, s{ptr_sreg+1}")
    k(f"s_mov_b32 s{sreg+2}, {nbytes:#x}")
    k(f"s_mov_b32 s{sreg+3}, 0x00020000")


STAMPS = False


def stamp(k, i):
    if STAMPS:
        k(f"s_memtime s[{86+2*i}:{87+2*i}]")


def stamp_flush(k, n, slot):
    if not STAMPS:
        return
    k("s_waitcnt lgkmcnt(0)")
    k(f"s_load_dwordx2 s[98:99], s[0:1], {KA['dbg']}")
    k("s_waitcnt lgkmcnt(0)")
    k("s_cmp_lg_u32 s2, 0")
    k(f"s_cbranch_scc1 L_nostamp{slot}")
    k("v_lshrrev_b32 v4, 6, v0")
    k(f"v_lshlrev_b32 v4, 5, v4")
    k(f"v_add_u32 v4, {slot*128}, v4")
    for i in range(1, n):
        k(f"s_sub_u32 s{86+2*i}, s{86+2*i}, s86")
        k(f"v_mov_b32 v5, s{86+2*i}")
        k(f"global_store_dword v4, v5, s[98:99] offset:{4*(i-1)}")
    k.lbl(f"L_nostamp{slot}")


def kernel_header(name):
    return f""".globl {name}
.p2align 8
.type {name},@function
{name}:
"""


def kernel_desc(name, vgprs, sgprs=102, accum=None):
    if accum is None:
        accum = (vgprs + 3) // 4 * 4
    return f""".section .rodata,"a"
.p2align 6
.amdhsa_kernel {name}
  .amdhsa_next_free_vgpr {vgprs}
  .amdhsa_next_free_sgpr {sgprs}
  .amdhsa_accum_offset {accum}
  .amdhsa_group_segment_fixed_size 0
  .amdhsa_kernarg_size 112
  .amdhsa_user_sgpr_count 2
  .amdhsa_user_sgpr_kernarg_segment_ptr 1
  .amdhsa_system_sgpr_workgroup_id_x 1
.end_amdhsa_kernel
.text
"""


PREP_KV_WGS = 256
PREP_GATE_WGS = 512
PREP_W1_WGS = 8 * 43
PREP_W2_WGS = 44 * 8
PREP_WGS = PREP_KV_WGS + PREP_GATE_WGS + PREP_W1_WGS + PREP_W2_WGS


def gen_transpose_role(k, tag, src_srd, src_row_bytes, dst_srd, dst_row_bytes, sr0, sc0, R, C):
    cpr = C // 8
    assert R * cpr == 256
    RS = 2 * R + 16
    lg = cpr.bit_length() - 1
    k(f"v_lshrrev_b32 v1, {lg}, v0")
    k(f"v_and_b32 v2, {cpr-1}, v0         ; chunk")
    k(f"v_add_u32 v3, s{sr0}, v1")
    k(f"s_mov_b32 s40, {src_row_bytes}")
    k(f"v_mul_lo_u32 v3, v3, s40")
    k(f"v_lshlrev_b32 v4, 4, v2")
    k(f"s_lshl_b32 s41, s{sc0}, 1")
    k(f"v_add3_u32 v3, v3, v4, s41")
    k(f"buffer_load_dwordx4 v[8:11], v3, s[{src_srd}:{src_srd+3}], 0 offen")
    k(f"v_mul_u32_u24 v5, {8*RS}, v2")
    k(f"v_lshl_add_u32 v5, v1, 1, v5")
    k("s_waitcnt vmcnt(0)")
    for e in range(8):
        op = "ds_write_b16" if e % 2 == 0 else "ds_write_b16_d16_hi"
        k(f"{op} v5, v{8 + e//2} offset:{e*RS}")
    k("s_waitcnt lgkmcnt(0)")
    k("s_barrier")
    cpd = R // 8
    lg2 = cpd.bit_length() - 1
    k(f"v_lshrrev_b32 v1, {lg2}, v0")
    k(f"v_and_b32 v2, {cpd-1}, v0")
    k(f"v_mul_u32_u24 v5, {RS}, v1")
    k(f"v_lshl_add_u32 v5, v2, 4, v5")
    k("ds_read_b128 v[8:11], v5")
    k(f"v_add_u32 v3, s{sc0}, v1")
    k(f"s_mov_b32 s40, {dst_row_bytes}")
    k(f"v_mul_lo_u32 v3, v3, s40")
    k(f"v_lshlrev_b32 v4, 4, v2")
    k(f"s_lshl_b32 s41, s{sr0}, 1")
    k(f"v_add3_u32 v3, v3, v4, s41")
    k("s_waitcnt lgkmcnt(0)")
    k(f"buffer_store_dwordx4 v[8:11], v3, s[{dst_srd}:{dst_srd+3}], 0 offen")
    k("s_endpgm")


def gen_prep():
    k = K()
    k(f"s_cmp_ge_u32 s2, {PREP_WGS}")
    k("s_cbranch_scc1 L_prep_exit")
    k(f"s_load_dwordx2 s[6:7], s[0:1], {KA['ws']}")
    k(f"s_cmp_ge_u32 s2, {PREP_KV_WGS}")
    k("s_cbranch_scc1 L_prep_gate")
    k(f"s_load_dwordx2 s[4:5], s[0:1], {KA['k']}")
    k(f"s_load_dwordx2 s[24:25], s[0:1], {KA['v']}")
    k(f"s_load_dwordx2 s[26:27], s[0:1], {KA['shift_k']}")
    k("s_lshr_b32 s3, s2, 3")
    k("s_lshl_b32 s3, s3, 6           ; s0 = 64*sblk")
    k("s_and_b32 s28, s2, 7")
    k("s_lshl_b32 s28, s28, 6         ; d0 = 64*dblk")
    k("v_lshrrev_b32 v1, 3, v0        ; r")
    k("v_and_b32 v2, 7, v0            ; c")
    k("v_lshlrev_b32 v3, 4, v2")
    k("s_lshl_b32 s29, s28, 1")
    k("v_add_u32 v3, s29, v3          ; colb = (d0+8c)*2")
    k("s_waitcnt lgkmcnt(0)")
    srd(k, 8, 4, S * D * 2)
    srd(k, 12, 24, S * D * 2)
    srd(k, 16, 26, D * 8)
    srd(k, 20, 6, D * S * 2, WS_KVR)
    k("v_lshlrev_b32 v4, 2, v3")
    for i in range(4):
        k(f"buffer_load_dwordx4 v[{16+4*i}:{19+4*i}], v4, s[16:19], 0 offen offset:{16*i}")
    RS = 144
    k(f"v_mul_u32_u24 v9, {8*RS}, v2")
    k("s_waitcnt vmcnt(0)")
    for e in range(8):
        k(f"v_lshlrev_b32 v{32+4*e+0}, 16, v{16+2*e}")
        k(f"v_and_b32 v{32+4*e+1}, 0xffff0000, v{16+2*e}")
        k(f"v_lshlrev_b32 v{32+4*e+2}, 16, v{17+2*e}")
        k(f"v_and_b32 v{32+4*e+3}, 0xffff0000, v{17+2*e}")
    for p in range(2):
        k(f"v_add_u32 v5, s3, v1")
        k(f"v_add_u32 v5, {32*p - 3}, v5" if 32 * p - 3 < 0 else f"v_add_u32 v5, {32*p-3}, v5")
        k("v_lshlrev_b32 v5, 10, v5")
        k("v_add_u32 v5, v5, v3")
        k("v_add_u32 v6, 0x400, v5")
        k("v_add_u32 v7, 0x800, v5")
        k("v_add_u32 v8, 0xc00, v5")
        k("buffer_load_dwordx4 v[64:67], v5, s[8:11], 0 offen")
        k("buffer_load_dwordx4 v[68:71], v6, s[8:11], 0 offen")
        k("buffer_load_dwordx4 v[72:75], v7, s[8:11], 0 offen")
        k("buffer_load_dwordx4 v[76:79], v8, s[8:11], 0 offen")
        k("buffer_load_dwordx4 v[80:83], v8, s[12:15], 0 offen")
        k("s_waitcnt vmcnt(0)")
        for i in range(4):
            e0, e1 = 2 * i, 2 * i + 1
            for j in range(4):
                k(f"v_lshlrev_b32 v84, 16, v{64+4*j+i}")
                k(f"v_and_b32 v85, 0xffff0000, v{64+4*j+i}")
                k(f"v_mul_f32 v84, v84, v{32+4*e0+3-j}")
                k(f"v_mul_f32 v85, v85, v{32+4*e1+3-j}")
                k("v_cvt_pk_bf16_f32 v86, v84, v85")
                if j == 0:
                    k("v_lshlrev_b32 v87, 16, v86")
                    k("v_and_b32 v88, 0xffff0000, v86")
                else:
                    k("v_lshlrev_b32 v84, 16, v86")
                    k("v_and_b32 v85, 0xffff0000, v86")
                    k("v_add_f32 v87, v87, v84")
                    k("v_add_f32 v88, v88, v85")
                    k("v_cvt_pk_bf16_f32 v86, v87, v88")
                    k("v_lshlrev_b32 v87, 16, v86")
                    k("v_and_b32 v88, 0xffff0000, v86")
            k(f"v_lshlrev_b32 v84, 16, v{80+i}")
            k(f"v_and_b32 v85, 0xffff0000, v{80+i}")
            k("v_mul_f32 v87, v87, v84")
            k("v_mul_f32 v88, v88, v85")
            k(f"v_cvt_pk_bf16_f32 v{90+i}, v87, v88")
        k(f"v_sub_u32 v10, {63-32*p}, v1")
        k("v_lshl_add_u32 v10, v10, 1, v9")
        for e in range(8):
            op = "ds_write_b16" if e % 2 == 0 else "ds_write_b16_d16_hi"
            k(f"{op} v10, v{90+e//2} offset:{e*RS}")
    k("s_waitcnt lgkmcnt(0)")
    k("s_barrier")
    k("v_lshrrev_b32 v1, 2, v0")
    k("v_and_b32 v2, 3, v0")
    k(f"v_mul_u32_u24 v5, {RS}, v1")
    k("v_lshl_add_u32 v5, v2, 5, v5")
    k("ds_read_b128 v[16:19], v5")
    k("ds_read_b128 v[20:23], v5 offset:16")
    k("v_add_u32 v3, s28, v1")
    k("v_lshlrev_b32 v3, 12, v3")
    k("v_lshl_add_u32 v3, v2, 5, v3")
    k("s_sub_u32 s29, 1984, s3")
    k("s_lshl_b32 s29, s29, 1")
    k("v_add_u32 v3, s29, v3")
    k("s_waitcnt lgkmcnt(0)")
    k("buffer_store_dwordx4 v[16:19], v3, s[20:23], 0 offen")
    k("buffer_store_dwordx4 v[20:23], v3, s[20:23], 0 offen offset:16")
    k("s_endpgm")

    k.lbl("L_prep_gate")
    k(f"s_cmp_ge_u32 s2, {PREP_KV_WGS + PREP_GATE_WGS}")
    k("s_cbranch_scc1 L_prep_w1")
    k(f"s_load_dwordx2 s[4:5], s[0:1], {KA['q']}")
    k(f"s_load_dwordx2 s[24:25], s[0:1], {KA['gate_w']}")
    k(f"s_sub_u32 s3, s2, {PREP_KV_WGS}")
    k("s_lshl_b32 s3, s3, 2")
    k("v_lshrrev_b32 v1, 6, v0        ; wave")
    k("v_and_b32 v2, 63, v0           ; lane")
    k("v_add_u32 v3, s3, v1           ; row")
    k("v_lshlrev_b32 v4, 10, v3")
    k("v_lshl_add_u32 v4, v2, 4, v4")
    k("v_lshlrev_b32 v5, 4, v2")
    k("s_waitcnt lgkmcnt(0)")
    srd(k, 8, 4, S * D * 2)
    srd(k, 12, 24, D * 2)
    srd(k, 20, 6, S * 4, WS_G)
    k("buffer_load_dwordx4 v[8:11], v4, s[8:11], 0 offen")
    k("buffer_load_dwordx4 v[12:15], v5, s[12:15], 0 offen")
    k("s_waitcnt vmcnt(0)")
    for i in range(4):
        k(f"v_lshlrev_b32 v16, 16, v{8+i}")
        k(f"v_and_b32 v17, 0xffff0000, v{8+i}")
        k(f"v_lshlrev_b32 v18, 16, v{12+i}")
        k(f"v_and_b32 v19, 0xffff0000, v{12+i}")
        k("v_mul_f32 v16, v16, v18")
        k("v_mul_f32 v17, v17, v19")
        k("v_cvt_pk_bf16_f32 v16, v16, v17")
        k("v_lshlrev_b32 v17, 16, v16")
        k("v_and_b32 v16, 0xffff0000, v16")
        if i == 0:
            k("v_add_f32 v20, v16, v17")
        else:
            k("v_add_f32 v20, v20, v17")
            k("v_add_f32 v20, v20, v16")
    k("s_nop 1")
    k("v_add_f32_dpp v20, v20, v20 quad_perm:[1,0,3,2] row_mask:0xf bank_mask:0xf")
    k("s_nop 1")
    k("v_add_f32_dpp v20, v20, v20 quad_perm:[2,3,0,1] row_mask:0xf bank_mask:0xf")
    k("s_nop 1")
    k("v_add_f32_dpp v20, v20, v20 row_half_mirror row_mask:0xf bank_mask:0xf")
    k("s_nop 1")
    k("v_add_f32_dpp v20, v20, v20 row_mirror row_mask:0xf bank_mask:0xf")
    k("s_nop 1")
    k("v_readlane_b32 s30, v20, 0")
    k("v_readlane_b32 s31, v20, 16")
    k("v_readlane_b32 s32, v20, 32")
    k("v_readlane_b32 s33, v20, 48")
    k("s_nop 3")
    k("v_mov_b32 v21, s30")
    k("v_add_f32 v21, s31, v21")
    k("v_add_f32 v21, s32, v21")
    k("v_add_f32 v21, s33, v21")
    k("v_cvt_pk_bf16_f32 v21, v21, v21")
    k("v_lshlrev_b32 v21, 16, v21")
    k("v_mul_f32 v21, 0xbfb8aa3b, v21")
    k("v_exp_f32 v21, v21")
    k("s_nop 0")
    k("v_add_f32 v21, 1.0, v21")
    k("v_rcp_f32 v21, v21")
    k("s_nop 0")
    k("v_cvt_pk_bf16_f32 v21, v21, v21")
    k("v_lshlrev_b32 v21, 16, v21")
    k("v_lshlrev_b32 v3, 2, v3")
    k("v_cmp_eq_u32 vcc, 0, v2")
    k("s_and_saveexec_b64 s[34:35], vcc")
    k("buffer_store_dword v21, v3, s[20:23], 0 offen")
    k("s_endpgm")

    k.lbl("L_prep_w1")
    k(f"s_cmp_ge_u32 s2, {PREP_KV_WGS + PREP_GATE_WGS + PREP_W1_WGS}")
    k("s_cbranch_scc1 L_prep_w2")
    k(f"s_load_dwordx2 s[4:5], s[0:1], {KA['w1']}")
    k(f"s_sub_u32 s3, s2, {PREP_KV_WGS + PREP_GATE_WGS}")
    k("s_and_b32 s28, s3, 7")
    k("s_lshl_b32 s28, s28, 6      ; k0")
    k("s_lshr_b32 s29, s3, 3")
    k("s_lshl_b32 s30, s29, 5      ; f0")
    k("s_waitcnt lgkmcnt(0)")
    srd(k, 8, 4, D * F * 2)
    srd(k, 20, 6, F * D * 2, WS_W1T)
    gen_transpose_role(k, "w1", 8, F * 2, 20, D * 2, 28, 30, 64, 32)

    k.lbl("L_prep_w2")
    k(f"s_load_dwordx2 s[4:5], s[0:1], {KA['w2']}")
    k(f"s_sub_u32 s3, s2, {PREP_KV_WGS + PREP_GATE_WGS + PREP_W1_WGS}")
    k("s_and_b32 s28, s3, 7")
    k("s_lshl_b32 s28, s28, 6      ; d0")
    k("s_lshr_b32 s29, s3, 3")
    k("s_lshl_b32 s30, s29, 5      ; f0")
    k("s_waitcnt lgkmcnt(0)")
    srd(k, 8, 4, F * D * 2)
    srd(k, 20, 6, D * FP * 2, WS_W2T)
    gen_transpose_role(k, "w2", 8, D * 2, 20, FP * 2, 30, 28, 32, 64)
    k.lbl("L_prep_exit")
    k("s_endpgm")
    return k.text()


def build(kernels):
    hdr = [f"; {NAME}: generated by dev/gen.py"]
    for (nm, body, vg, grid, block, lds) in kernels:
        hdr.append(f"; @launch kernel={nm} grid=({grid},1,1) block=({block},1,1) lds={lds}")
    out = "\n".join(hdr) + "\n"
    out += '.amdgcn_target "amdgcn-amd-amdhsa--gfx950"\n.text\n'
    for (nm, body, vg, grid, block, lds) in kernels:
        out += kernel_header(nm) + body
    for (nm, body, vg, grid, block, lds) in kernels:
        out += kernel_desc(nm, vg)
    return out


if __name__ == "__main__":
    kernels = [
        ("prep_kernel", gen_prep(), 96, PREP_WGS, 256, 16384),
    ]
    txt = build(kernels)
    path = sys.argv[1] if len(sys.argv) > 1 else f"cdna_kernels/{NAME}.s"
    open(path, "w").write(txt)
    print("wrote", path, len(txt), "bytes")
```

```python
from gen import *

CONV_WGS = 256
CSTRIDE = 4416
HSTRIDE = 4 * CSTRIDE
XOFF = 0
CONV_LDS = 2 * HSTRIDE

C0, C1 = 64, 80
B0, B1 = 96, 100
AP, AQ = 104, 120
VMASK = 136


def gen_conv(k, wg_sreg="s2", standalone=True):
    k(f"s_load_dwordx2 s[4:5], s[0:1], {KA['ssm_k']}")
    k(f"s_load_dwordx2 s[6:7], s[0:1], {KA['ws']}")
    k(f"s_load_dwordx2 s[24:25], s[0:1], {KA['ssm_D']}")
    k("v_lshrrev_b32 v1, 6, v0          ; wave")
    k("v_and_b32 v2, 63, v0             ; lane")
    k("v_readfirstlane_b32 s36, v1")
    k("s_lshr_b32 s37, s36, 1           ; ch")
    k("s_and_b32 s38, s36, 1            ; ks")
    k(f"s_lshl_b32 s39, {wg_sreg}, 1")
    k("s_add_u32 s40, s39, s37")
    k("v_and_b32 v3, 31, v2")
    k("v_lshrrev_b32 v4, 5, v2          ; half")
    k("s_waitcnt lgkmcnt(0)")
    srd(k, 8, 4, D * S * 2)
    srd(k, 12, 6, D * S * 2, WS_KVR)
    srd(k, 16, 6, D * S * 2, WS_Y2T)
    srd(k, 20, 24, D * 2)
    k("s_lshl_b32 s41, s39, 12          ; d0*4096")
    k("v_lshlrev_b32 v5, 4, v0          ; 16*t")
    k("v_add_u32 v6, s41, v5")
    k("v_add_u32 v8, 0x1000, v6         ; ch1")
    k("buffer_load_dwordx4 v[16:19], v6, s[8:11], 0 offen")
    k("buffer_load_dwordx4 v[20:23], v6, s[8:11], 0 offen offset:16")
    k("buffer_load_dwordx4 v[24:27], v8, s[8:11], 0 offen")
    k("buffer_load_dwordx4 v[28:31], v8, s[8:11], 0 offen offset:16")
    k("v_and_b32 v32, 7, v0")
    k("v_lshrrev_b32 v33, 3, v0")
    k("v_lshlrev_b32 v34, 12, v33")
    k("v_add_u32 v34, s41, v34")
    k("s_lshl_b32 s42, s40, 12")
    k("s_lshl_b32 s43, s38, 6")
    k("s_sub_u32 s42, s42, s43")
    k("s_add_u32 s42, s42, 4064")
    k("v_lshlrev_b32 v7, 7, v3          ; 128*n")
    k("v_sub_u32 v7, s42, v7")
    k("v_lshl_add_u32 v7, v4, 4, v7     ; + 16*half")
    k(f"buffer_load_dwordx4 v[{B0}:{B0+3}], v7, s[12:15], 0 offen")
    k("v_subrev_u32 v8, 32, v7")
    k(f"buffer_load_dwordx4 v[{B1}:{B1+3}], v8, s[12:15], 0 offen")
    k("s_lshl_b32 s44, s40, 1")
    k("v_mov_b32 v9, s44")
    k("buffer_load_ushort v10, v9, s[20:23], 0 offen")
    for i in range(32):
        k(f"v_mov_b32 v{C0+i}, 0")
    k(f"v_mov_b32 v{VMASK}, -1")
    k("v_cmp_ne_u32 vcc, 32, v2")
    k("s_nop 1")
    k(f"v_cndmask_b32 v{VMASK}, 0, v{VMASK}, vcc")
    k("s_waitcnt vmcnt(4)")
    def copies(w, dst_off):
        k(f"ds_write_b128 v5, v[{w}:{w+3}] offset:{dst_off}")
        k(f"ds_write_b128 v5, v[{w+1}:{w+4}] offset:{dst_off+2*CSTRIDE}" if (w + 1) % 2 == 0 else "")
        for i in range(4):
            k(f"v_alignbyte_b32 v{40+i}, v{w+i+1}, v{w+i}, 2")
            k(f"v_alignbyte_b32 v{44+i}, v{w+i+2}, v{w+i+1}, 2")
        k(f"ds_write_b128 v5, v[40:43] offset:{dst_off+CSTRIDE}")
        k(f"ds_write_b128 v5, v[44:47] offset:{dst_off+3*CSTRIDE}")
    def copies2(w, dst_off):
        for i in range(4):
            k(f"v_mov_b32 v{48+i}, v{w+1+i}")
        k(f"ds_write_b128 v5, v[48:51] offset:{dst_off+2*CSTRIDE}")
    copies(16, 128); copies2(16, 128)
    k("s_waitcnt vmcnt(2)")
    copies(24, HSTRIDE + 128); copies2(24, HSTRIDE + 128)
    k("v_cmp_gt_u32 vcc, 16, v0")
    k("s_and_saveexec_b64 s[34:35], vcc")
    k("s_cbranch_execz L_conv_nozero")
    k("buffer_load_dwordx4 v[20:23], v34, s[8:11], 0 offen")
    for i in range(4):
        k(f"v_mov_b32 v{16+i}, 0")
    k(f"v_mul_u32_u24 v36, {HSTRIDE}, v33")
    k("v_lshl_add_u32 v36, v32, 4, v36")
    k("v_mov_b32 v37, v5")
    k("v_mov_b32 v5, v36")
    k("v_cmp_eq_u32 vcc, 7, v32")
    k("s_waitcnt vmcnt(0)")
    for i in range(4):
        k(f"v_cndmask_b32 v{20+i}, 0, v{20+i}, vcc")
    copies(16, 0); copies2(16, 0)
    k("v_mov_b32 v5, v37")
    k.lbl("L_conv_nozero")
    k("s_mov_b64 exec, s[34:35]")
    k("v_add_u32 v11, 1, v3")
    k("v_and_b32 v11, 3, v11                ; j")
    k(f"v_mul_u32_u24 v12, {CSTRIDE}, v11")
    k("v_lshl_add_u32 v13, v4, 3, v3")
    k("v_add_u32 v13, 49, v13")
    k("v_sub_u32 v13, v13, v11")
    k("v_lshl_add_u32 v12, v13, 1, v12")
    k(f"s_mul_i32 s45, s37, {HSTRIDE}")
    k("s_sub_u32 s45, s45, s43")
    k("s_sub_u32 s45, s45, 32")
    k("v_add_u32 v11, s45, v12          ; A base")
    k("s_waitcnt lgkmcnt(0)")
    k("s_barrier")

    def a_loads(m, buf):
        for kk in range(2):
            for mb in range(2):
                idx = kk * 2 + mb
                off = 128 * m + 64 * mb - 32 * kk + 32
                k(f"ds_read_b64 v[{buf+4*idx}:{buf+4*idx+1}], v11 offset:{off}")
                k(f"ds_read_b64 v[{buf+4*idx+2}:{buf+4*idx+3}], v11 offset:{off+8}")

    a_loads(0, AP)
    k("s_waitcnt vmcnt(0)")
    for m in range(32):
        cur = AP if m % 2 == 0 else AQ
        nxt = AQ if m % 2 == 0 else AP
        if m < 31:
            a_loads(m + 1, nxt)
            k("s_waitcnt lgkmcnt(8)")
        else:
            k("s_waitcnt lgkmcnt(0)")
        k(f"v_mfma_f32_32x32x16_bf16 v[{C0}:{C0+15}], v[{cur}:{cur+3}], v[{B0}:{B0+3}], v[{C0}:{C0+15}]")
        k(f"v_mfma_f32_32x32x16_bf16 v[{C1}:{C1+15}], v[{cur+4}:{cur+7}], v[{B0}:{B0+3}], v[{C1}:{C1+15}]")
        k(f"v_mfma_f32_32x32x16_bf16 v[{C0}:{C0+15}], v[{cur+8}:{cur+11}], v[{B1}:{B1+3}], v[{C0}:{C0+15}]")
        k(f"v_mfma_f32_32x32x16_bf16 v[{C1}:{C1+15}], v[{cur+12}:{cur+15}], v[{B1}:{B1+3}], v[{C1}:{C1+15}]")
        if m < 31:
            for r in range(8):
                k(f"v_and_b32_dpp v{B0+r}, v{B0+r}, v{VMASK} wave_shr:1 row_mask:0xf bank_mask:0xf bound_ctrl:0")
    k("s_nop 7")
    k("s_nop 7")
    k("s_barrier")
    k(f"s_mul_i32 s46, s36, 4096")
    k(f"s_add_u32 s46, s46, {XOFF}")
    k("v_lshlrev_b32 v12, 4, v2")
    k("v_add_u32 v12, s46, v12")
    k("s_xor_b32 s47, s36, 1")
    k(f"s_mul_i32 s47, s47, 4096")
    k(f"s_add_u32 s47, s47, {XOFF}")
    k("v_lshlrev_b32 v13, 4, v2")
    k("v_add_u32 v13, s47, v13")
    k("s_cmp_eq_u32 s38, 0")
    k("s_cbranch_scc1 L_conv_ks0")
    for g in range(4):
        k(f"ds_write_b128 v12, v[{C0+4*g}:{C0+4*g+3}] offset:{1024*g}")
    k("s_waitcnt lgkmcnt(0)")
    for i in range(16):
        k(f"v_mov_b32 v{C0+i}, v{C1+i}")
    k("s_branch L_conv_xchg")
    k.lbl("L_conv_ks0")
    for g in range(4):
        k(f"ds_write_b128 v12, v[{C1+4*g}:{C1+4*g+3}] offset:{1024*g}")
    k("s_waitcnt lgkmcnt(0)")
    k.lbl("L_conv_xchg")
    k("s_barrier")
    for g in range(4):
        k(f"ds_read_b128 v[{C1+4*g}:{C1+4*g+3}], v13 offset:{1024*g}")
    k("s_lshl_b32 s48, s38, 6           ; 2*32*ks")
    k("v_lshlrev_b32 v14, 7, v3         ; 128*a")
    k("v_lshl_add_u32 v14, v4, 3, v14   ; + 8*half")
    k("v_add_u32 v14, s48, v14          ; 2*s_g (g=0)")
    k("s_lshl_b32 s49, s40, 12")
    k("v_add_u32 v15, s49, v14")
    k("s_add_u32 s49, s49, 4088")
    k("v_sub_u32 v14, s49, v14")
    for g in range(4):
        k(f"v_subrev_u32 v5, {16*g}, v14")
        k(f"buffer_load_dwordx2 v[{16+2*g}:{17+2*g}], v5, s[12:15], 0 offen")
    k("v_lshlrev_b32 v10, 16, v10       ; D[d] as f32")
    k("s_waitcnt lgkmcnt(0)")
    for i in range(16):
        k(f"v_add_f32 v{C0+i}, v{C0+i}, v{C1+i}")
    k("s_waitcnt vmcnt(0)")
    for g in range(4):
        c = C0 + 4 * g
        kd0, kd1 = 16 + 2 * g, 17 + 2 * g
        k(f"v_cvt_pk_bf16_f32 v24, v{c}, v{c+1}")
        k(f"v_cvt_pk_bf16_f32 v25, v{c+2}, v{c+3}")
        k(f"v_and_b32 v26, 0xffff0000, v{kd1}     ; kv[s]")
        k(f"v_lshlrev_b32 v27, 16, v{kd1}         ; kv[s+1]")
        k(f"v_and_b32 v28, 0xffff0000, v{kd0}     ; kv[s+2]")
        k(f"v_lshlrev_b32 v29, 16, v{kd0}         ; kv[s+3]")
        k("v_mul_f32 v26, v26, v10")
        k("v_mul_f32 v27, v27, v10")
        k("v_mul_f32 v28, v28, v10")
        k("v_mul_f32 v29, v29, v10")
        k("v_cvt_pk_bf16_f32 v26, v26, v27")
        k("v_cvt_pk_bf16_f32 v28, v28, v29")
        k("v_lshlrev_b32 v30, 16, v24")
        k("v_and_b32 v31, 0xffff0000, v24")
        k("v_lshlrev_b32 v32, 16, v25")
        k("v_and_b32 v33, 0xffff0000, v25")
        k("v_lshlrev_b32 v24, 16, v26")
        k("v_and_b32 v25, 0xffff0000, v26")
        k("v_lshlrev_b32 v26, 16, v28")
        k("v_and_b32 v27, 0xffff0000, v28")
        k("v_add_f32 v30, v30, v24")
        k("v_add_f32 v31, v31, v25")
        k("v_add_f32 v32, v32, v26")
        k("v_add_f32 v33, v33, v27")
        k("v_cvt_pk_bf16_f32 v30, v30, v31")
        k("v_cvt_pk_bf16_f32 v31, v32, v33")
        k(f"buffer_store_dwordx2 v[30:31], v15, s[16:19], 0 offen offset:{16*g}")
        k("s_nop 1")
    k("s_endpgm")


def gen_conv_kernel():
    k = K()
    k(f"s_cmp_ge_u32 s2, {CONV_WGS}")
    k("s_cbranch_scc1 L_conv_exit")
    gen_conv(k)
    k.lbl("L_conv_exit")
    k("s_endpgm")
    return k.text()
```

```python
from gen import *

LOG2E = 0x3fb8aa3b


class GemmCfg:
    def __init__(self, name, MT, NT, KTOT, RBW, RBA, NST, mts_per_wave, wave_split):
        self.name = name
        self.MT, self.NT, self.KTOT, self.RBW, self.RBA, self.NST = MT, NT, KTOT, RBW, RBA, NST
        self.mts = mts_per_wave
        self.wave_split = wave_split
        self.NI = (MT + NT) // 8
        self.NIW = self.NI // 4
        self.STAGE = (MT + NT) * 128
        self.NSTEP = KTOT // 64
        self.LDS = self.STAGE * NST


G1 = GemmCfg("g1", 96, 128, 512, 1024, 1024, 5, 3, "n4")
G2 = GemmCfg("g2", 64, 64, FP, FP * 2, FP * 2, 6, 1, "m2n2")

ACC = 64
FRAG = 16
VRA = 2
VRB = 6
VA_T = 48
VOW, VOA = 10, 11
VLANE, VWAVE = 12, 13


def gemm_mainloop(k, c, sW, sA, s_soffW, s_soffA, s_wave, pre_epilogue=None):
    nW = c.MT // 32
    nA = c.NT // 32
    k(f"v_and_b32 v{VLANE}, 63, v0")
    k(f"v_lshrrev_b32 v{VWAVE}, 6, v0")
    k(f"v_lshrrev_b32 v14, 3, v{VLANE}")
    k(f"v_lshl_add_u32 v14, v{VWAVE}, 3, v14")
    k(f"v_lshrrev_b32 v15, 4, v{VLANE}")
    k(f"v_lshl_add_u32 v15, v{VWAVE}, 2, v15")
    k(f"v_xor_b32 v15, v15, v{VLANE}")
    k(f"v_and_b32 v15, 7, v15")
    k(f"s_mov_b32 s60, {c.RBW}")
    k(f"v_mul_lo_u32 v{VOW}, v14, s60")
    k(f"v_lshl_add_u32 v{VOW}, v15, 4, v{VOW}")
    k(f"s_mov_b32 s60, {c.RBA}")
    k(f"v_mul_lo_u32 v{VOA}, v14, s60")
    k(f"v_lshl_add_u32 v{VOA}, v15, 4, v{VOA}")
    k(f"v_and_b32 v14, 31, v{VLANE}")
    k(f"v_lshrrev_b32 v15, 5, v{VLANE}")
    k("v_lshrrev_b32 v56, 1, v14")
    k("v_and_b32 v56, 7, v56                           ; swizzle")
    k("v_lshlrev_b32 v57, 7, v14                       ; row*128")
    for t in range(4):
        k(f"v_add_u32 v58, {2*t}, v15")
        k("v_xor_b32 v58, v58, v56")
        k(f"v_lshl_add_u32 v{VRA+t}, v58, 4, v57")
    if c.wave_split == 'n4':
        k(f"v_lshlrev_b32 v58, 12, v{VWAVE}")
        k(f"v_add_u32 v58, {c.MT*128}, v58")
        for t in range(4):
            k(f"v_add_u32 v{VRB+t}, v{VRA+t}, v58")
    else:
        k(f"v_lshrrev_b32 v58, 1, v{VWAVE}")
        k("v_lshlrev_b32 v58, 12, v58")
        k(f"v_add_u32 v58, {c.MT*128}, v58")
        for t in range(4):
            k(f"v_add_u32 v{VRB+t}, v{VRA+t}, v58")
        k(f"v_and_b32 v58, 1, v{VWAVE}")
        k("v_lshlrev_b32 v58, 12, v58")
        for t in range(4):
            k(f"v_add_u32 v{VRA+t}, v{VRA+t}, v58")
    for i in range(16 * c.mts):
        k(f"v_mov_b32 v{ACC+i}, 0")
    k(f"s_lshl_b32 s61, {s_wave}, 10")

    def dma_stage(st):
        slot = st % c.NST
        for i in range(c.NIW):
            k(f"s_add_u32 s62, s61, {slot*c.STAGE + i*4096}")
            k("s_mov_b32 m0, s62")
            if i < nW:
                k(f"buffer_load_dwordx4 v{VOW}, s[{sW}:{sW+3}], s{s_soffW+i} offen lds")
            else:
                k(f"buffer_load_dwordx4 v{VOA}, s[{sA}:{sA+3}], s{s_soffA+i-nW} offen lds")
        k(f"v_add_u32 v{VOW}, 0x80, v{VOW}")
        k(f"v_add_u32 v{VOA}, 0x80, v{VOA}")

    nfr = c.mts + 1
    def frag_reads(t, buf):
        base = FRAG + buf * nfr * 4
        for mt in range(c.mts):
            k(f"ds_read_b128 v[{base+4*mt}:{base+4*mt+3}], v{VA_T+t} offset:{mt*4096}")
        k(f"ds_read_b128 v[{base+4*c.mts}:{base+4*c.mts+3}], v{VA_T+4+t}")

    def mfmas(buf):
        base = FRAG + buf * nfr * 4
        for mt in range(c.mts):
            a = ACC + 16 * mt
            k(f"v_mfma_f32_32x32x16_bf16 v[{a}:{a+15}], v[{base+4*mt}:{base+4*mt+3}], v[{base+4*c.mts}:{base+4*c.mts+3}], v[{a}:{a+15}]")

    stamp(k, 1)
    if pre_epilogue is not None:
        pre_epilogue()
    for st in range(min(c.NST - 1, c.NSTEP)):
        dma_stage(st)
    inflight_after0 = min(c.NST - 1, c.NSTEP) - 1
    k(f"s_waitcnt vmcnt({inflight_after0*c.NIW})")
    k("s_barrier")
    stamp(k, 2)

    def rd(step, t):
        slot = step % c.NST
        buf = (4 * step + t) % 2
        k(f"v_add_u32 v{VA_T}, {slot*c.STAGE}, v{VRA+t}")
        k(f"v_add_u32 v{VA_T+1}, {slot*c.STAGE}, v{VRB+t}")
        base = FRAG + buf * nfr * 4
        for mt in range(c.mts):
            k(f"ds_read_b128 v[{base+4*mt}:{base+4*mt+3}], v{VA_T} offset:{mt*4096}")
        k(f"ds_read_b128 v[{base+4*c.mts}:{base+4*c.mts+3}], v{VA_T+1}")

    rd(0, 0)
    for step in range(c.NSTEP):
        for t in range(4):
            nxt = None
            if t < 3:
                nxt = (step, t + 1)
            elif step + 1 < c.NSTEP:
                nxt = (step + 1, 0)
            if t == 2 and step + 1 < c.NSTEP:
                last_issued = min(step + c.NST - 2, c.NSTEP - 1)
                n_after = last_issued - (step + 1)
                k(f"s_waitcnt vmcnt({n_after*c.NIW})")
                k("s_barrier")
                if step + c.NST - 1 < c.NSTEP:
                    dma_stage(step + c.NST - 1)
            if nxt is not None:
                rd(*nxt)
                k(f"s_waitcnt lgkmcnt({nfr})")
            else:
                k("s_waitcnt lgkmcnt(0)")
            mfmas((4 * step + t) % 2)


def mish4(k, a, bpair, out0, out1, t):
    k(f"v_cvt_pk_bf16_f32 v{t}, v{a}, v{a+1}")
    k(f"v_cvt_pk_bf16_f32 v{t+1}, v{a+2}, v{a+3}")
    k(f"v_lshlrev_b32 v{a}, 16, v{t}")
    k(f"v_and_b32 v{a+1}, 0xffff0000, v{t}")
    k(f"v_lshlrev_b32 v{a+2}, 16, v{t+1}")
    k(f"v_and_b32 v{a+3}, 0xffff0000, v{t+1}")
    k(f"v_lshlrev_b32 v{t}, 16, v{bpair}")
    k(f"v_and_b32 v{t+1}, 0xffff0000, v{bpair}")
    k(f"v_lshlrev_b32 v{t+2}, 16, v{bpair+1}")
    k(f"v_and_b32 v{t+3}, 0xffff0000, v{bpair+1}")
    for r in range(4):
        k(f"v_add_f32 v{a+r}, v{a+r}, v{t+r}")
    k(f"v_cvt_pk_bf16_f32 v{t}, v{a}, v{a+1}")
    k(f"v_cvt_pk_bf16_f32 v{t+1}, v{a+2}, v{a+3}")
    k(f"v_lshlrev_b32 v{a}, 16, v{t}")
    k(f"v_and_b32 v{a+1}, 0xffff0000, v{t}")
    k(f"v_lshlrev_b32 v{a+2}, 16, v{t+1}")
    k(f"v_and_b32 v{a+3}, 0xffff0000, v{t+1}")
    for r in range(4):
        k(f"v_mul_f32 v{t+r}, {LOG2E:#x}, v{a+r}")
    for r in range(4):
        k(f"v_min_f32 v{t+r}, 0x42200000, v{t+r}")
    for r in range(4):
        k(f"v_exp_f32 v{t+r}, v{t+r}")
    k("s_nop 0")
    for r in range(4):
        k(f"v_add_f32 v{t+4+r}, 2.0, v{t+r}")
    for r in range(4):
        k(f"v_mul_f32 v{t+r}, v{t+r}, v{t+4+r}")
    for r in range(4):
        k(f"v_add_f32 v{t+4+r}, 2.0, v{t+r}")
    for r in range(4):
        k(f"v_rcp_f32 v{t+4+r}, v{t+4+r}")
    k("s_nop 0")
    for r in range(4):
        k(f"v_mul_f32 v{t+r}, v{t+r}, v{t+4+r}")
    for r in range(4):
        k(f"v_mul_f32 v{t+r}, v{t+r}, v{a+r}")
    k(f"v_cvt_pk_bf16_f32 v{out0}, v{t}, v{t+1}")
    k(f"v_cvt_pk_bf16_f32 v{out1}, v{t+2}, v{t+3}")


GEMM1_WGS = 15 * 16
GEMM2_WGS = 256


def gen_gemm1(k, wg="s2"):
    c = G1
    stamp(k, 0)
    k(f"s_load_dwordx2 s[4:5], s[0:1], {KA['q']}")
    k(f"s_load_dwordx2 s[6:7], s[0:1], {KA['ws']}")
    k(f"s_load_dwordx2 s[24:25], s[0:1], {KA['b1']}")
    k(f"s_and_b32 s26, {wg}, 15          ; sb")
    k(f"s_lshr_b32 s27, {wg}, 4          ; fb")
    k("v_lshrrev_b32 v1, 6, v0")
    k("s_nop 0")
    k("v_readfirstlane_b32 s28, v1      ; wave")
    k("s_mul_i32 s29, s27, 96           ; f0")
    k("s_lshl_b32 s30, s26, 7           ; s0")
    for i in range(3):
        k(f"s_add_u32 s{64+i}, s29, {32*i}")
        k(f"s_lshl_b32 s{64+i}, s{64+i}, 10")
    for i in range(4):
        k(f"s_add_u32 s{68+i}, s30, {32*i}")
        k(f"s_lshl_b32 s{68+i}, s{68+i}, 10")
    k("s_waitcnt lgkmcnt(0)")
    srd(k, 8, 6, F * D * 2, WS_W1T)
    srd(k, 12, 4, S * D * 2)
    srd(k, 16, 24, F * 2)
    srd(k, 20, 6, S * FP * 2, WS_ACT)
    gemm_mainloop(k, c, 8, 12, 64, 68, "s28")
    stamp(k, 3)
    k(f"v_and_b32 v14, 31, v{VLANE}")
    k(f"v_lshrrev_b32 v15, 5, v{VLANE}")
    k(f"v_lshl_add_u32 v14, v{VWAVE}, 5, v14")
    k("v_add_u32 v14, s30, v14                 ; s")
    k(f"s_mov_b32 s60, {FP*2}")
    k("v_mul_lo_u32 v14, v14, s60")
    k("s_lshl_b32 s31, s29, 1")
    k("v_lshl_add_u32 v15, v15, 3, s31         ; (f0+4half)*2")
    k("v_add_u32 v14, v14, v15")
    for mt in range(3):
        for g in range(4):
            k(f"buffer_load_dwordx2 v[{16+8*mt+2*g}:{17+8*mt+2*g}], v15, s[16:19], 0 offen offset:{64*mt+16*g}")
    k("s_waitcnt vmcnt(0)")
    for mt in range(3):
        if mt == 2:
            k("s_cmp_eq_u32 s27, 14")
            k("s_cbranch_scc1 L_g1_done")
        for g in range(4):
            mish4(k, ACC + 16 * mt + 4 * g, 16 + 8 * mt + 2 * g, 2, 3, 40)
            k(f"buffer_store_dwordx2 v[2:3], v14, s[20:23], 0 offen offset:{64*mt+16*g}")
            k("s_nop 1")
    k.lbl("L_g1_done")
    stamp(k, 4)
    stamp_flush(k, 5, 0)
    k("s_endpgm")


def gen_gemm2(k, wg="s2"):
    c = G2
    stamp(k, 0)
    k(f"s_load_dwordx2 s[4:5], s[0:1], {KA['q']}")
    k(f"s_load_dwordx2 s[6:7], s[0:1], {KA['ws']}")
    k(f"s_load_dwordx2 s[24:25], s[0:1], {KA['out']}")
    k(f"s_and_b32 s26, {wg}, 31          ; sb")
    k(f"s_lshr_b32 s27, {wg}, 5          ; db")
    k("v_lshrrev_b32 v1, 6, v0")
    k("s_nop 0")
    k("v_readfirstlane_b32 s28, v1      ; wave")
    k("s_lshl_b32 s29, s27, 6           ; d0")
    k("s_lshl_b32 s30, s26, 6           ; s0")
    k(f"s_mov_b32 s60, {FP*2}")
    for i in range(2):
        k(f"s_add_u32 s{64+i}, s29, {32*i}")
        k(f"s_mul_i32 s{64+i}, s{64+i}, s60")
        k(f"s_add_u32 s{68+i}, s30, {32*i}")
        k(f"s_mul_i32 s{68+i}, s{68+i}, s60")
    k("s_waitcnt lgkmcnt(0)")
    srd(k, 8, 6, D * FP * 2, WS_W2T)
    srd(k, 12, 6, S * FP * 2, WS_ACT)
    srd(k, 16, 6, D * S * 2, WS_Y2T)
    srd(k, 20, 4, S * D * 2)
    srd(k, 72, 24, S * D * 2)
    srd(k, 76, 6, S * 4, WS_G)
    gemm_mainloop(k, c, 8, 12, 64, 68, "s28")
    stamp(k, 3)
    k(f"v_and_b32 v14, 31, v{VLANE}")
    k(f"v_lshrrev_b32 v15, 5, v{VLANE}")
    k(f"v_lshrrev_b32 v16, 1, v{VWAVE}")
    k("v_lshl_add_u32 v14, v16, 5, v14")
    k("v_add_u32 v14, s30, v14                 ; s")
    k(f"v_and_b32 v16, 1, v{VWAVE}")
    k("v_lshlrev_b32 v16, 5, v16")
    k("v_lshl_add_u32 v16, v15, 2, v16")
    k("v_add_u32 v16, s29, v16                 ; d (g=0,r=0)")
    k("v_lshlrev_b32 v17, 2, v14")
    k("buffer_load_dword v18, v17, s[76:79], 0 offen      ; g")
    k("v_lshlrev_b32 v19, 12, v16")
    k("v_lshl_add_u32 v19, v14, 1, v19")
    k("v_lshlrev_b32 v20, 10, v14")
    k("v_lshl_add_u32 v20, v16, 1, v20")
    for g in range(4):
        for r in range(4):
            k(f"s_mov_b32 s62, {(8*g+r)*4096}")
            k(f"buffer_load_ushort v{24+4*g+r}, v19, s[16:19], s62 offen")
        k(f"buffer_load_dwordx2 v[{40+2*g}:{41+2*g}], v20, s[20:23], 0 offen offset:{16*g}")
    k("s_waitcnt vmcnt(0)")
    k("v_sub_f32 v21, 1.0, v18")
    k("v_cvt_pk_bf16_f32 v21, v21, v21")
    k("v_lshlrev_b32 v21, 16, v21              ; 1-g (bf16)")
    for g in range(4):
        a = ACC + 4 * g
        k(f"v_cvt_pk_bf16_f32 v2, v{a}, v{a+1}")
        k(f"v_cvt_pk_bf16_f32 v3, v{a+2}, v{a+3}")
        k(f"v_lshlrev_b32 v{a}, 16, v2")
        k(f"v_and_b32 v{a+1}, 0xffff0000, v2")
        k(f"v_lshlrev_b32 v{a+2}, 16, v3")
        k(f"v_and_b32 v{a+3}, 0xffff0000, v3")
        for r in range(4):
            k(f"v_mul_f32 v{a+r}, v{a+r}, v21")
        k(f"v_cvt_pk_bf16_f32 v2, v{a}, v{a+1}")
        k(f"v_cvt_pk_bf16_f32 v3, v{a+2}, v{a+3}")
        k(f"v_lshlrev_b32 v{a}, 16, v2")
        k(f"v_and_b32 v{a+1}, 0xffff0000, v2")
        k(f"v_lshlrev_b32 v{a+2}, 16, v3")
        k(f"v_and_b32 v{a+3}, 0xffff0000, v3")
        y = 24 + 4 * g
        qq = 40 + 2 * g
        k(f"v_lshlrev_b32 v4, 16, v{qq}")
        k(f"v_and_b32 v5, 0xffff0000, v{qq}")
        k(f"v_lshlrev_b32 v6, 16, v{qq+1}")
        k(f"v_and_b32 v7, 0xffff0000, v{qq+1}")
        for r in range(4):
            k(f"v_lshlrev_b32 v{y+r}, 16, v{y+r}")
            k(f"v_mul_f32 v{4+r}, v{4+r}, v{y+r}")
        k("v_cvt_pk_bf16_f32 v2, v4, v5")
        k("v_cvt_pk_bf16_f32 v3, v6, v7")
        k("v_lshlrev_b32 v4, 16, v2")
        k("v_and_b32 v5, 0xffff0000, v2")
        k("v_lshlrev_b32 v6, 16, v3")
        k("v_and_b32 v7, 0xffff0000, v3")
        for r in range(4):
            k(f"v_mul_f32 v{4+r}, v{4+r}, v18")
        k("v_cvt_pk_bf16_f32 v2, v4, v5")
        k("v_cvt_pk_bf16_f32 v3, v6, v7")
        k("v_lshlrev_b32 v4, 16, v2")
        k("v_and_b32 v5, 0xffff0000, v2")
        k("v_lshlrev_b32 v6, 16, v3")
        k("v_and_b32 v7, 0xffff0000, v3")
        for r in range(4):
            k(f"v_add_f32 v{4+r}, v{4+r}, v{a+r}")
        k("v_cvt_pk_bf16_f32 v2, v4, v5")
        k("v_cvt_pk_bf16_f32 v3, v6, v7")
        k(f"buffer_store_dwordx2 v[2:3], v20, s[72:75], 0 offen offset:{16*g}")
        k("s_nop 1")
    stamp(k, 4)
    stamp_flush(k, 5, 1)
    k("s_endpgm")


def gen_gemm1_kernel():
    k = K()
    k(f"s_cmp_ge_u32 s2, {GEMM1_WGS}")
    k("s_cbranch_scc1 L_g1_exit")
    gen_gemm1(k)
    k.lbl("L_g1_exit")
    k("s_endpgm")
    return k.text()


def gen_gemm2_kernel():
    k = K()
    k(f"s_cmp_ge_u32 s2, {GEMM2_WGS}")
    k("s_cbranch_scc1 L_g2_exit")
    gen_gemm2(k)
    k.lbl("L_g2_exit")
    k("s_endpgm")
    return k.text()
```

```python
import sys
import gen
if len(sys.argv) > 2 and sys.argv[2] == 'stamps': gen.STAMPS = True
from gen import *
from gen_conv import *
import gen_gemm
from gen_gemm import *
NST1 = int(sys.argv[3]) if len(sys.argv) > 3 else 2
gen_gemm.G1 = GemmCfg("g1", 96, 128, 512, 1024, 1024, NST1, 3, "n4")
NST2 = int(sys.argv[4]) if len(sys.argv) > 4 else 3
gen_gemm.G2 = GemmCfg("g2", 64, 64, FP, FP * 2, FP * 2, NST2, 1, "m2n2")

def gen_mid():
    k = K()
    k(f"s_cmp_ge_u32 s2, {CONV_WGS + GEMM1_WGS}")
    k("s_cbranch_scc1 L_mid_exit")
    k(f"s_cmp_ge_u32 s2, {CONV_WGS}")
    k("s_cbranch_scc1 L_mid_g1")
    gen_conv(k)
    k.lbl("L_mid_g1")
    k(f"s_sub_u32 s3, s2, {CONV_WGS}")
    gen_gemm.gen_gemm1(k, wg="s3")
    k.lbl("L_mid_exit")
    k("s_endpgm")
    return k.text()

kernels = [
    ("prep_kernel", gen_prep(), 128, PREP_WGS, 256, 16384),
    ("mid_kernel", gen_mid(), 140, CONV_WGS + GEMM1_WGS, 256, max(CONV_LDS, gen_gemm.G1.LDS)),
    ("gemm2_kernel", gen_gemm.gen_gemm2_kernel(), 80, GEMM2_WGS, 256, gen_gemm.G2.LDS),
]
txt = build(kernels)
path = sys.argv[1] if len(sys.argv) > 1 else f"cdna_kernels/{NAME}.s"
open(path, "w").write(txt)
print("wrote", path, len(txt), "bytes")
```

```python
import sys

NAME = "gated_mix__ssm_conv_h3__dense_activation_mish__prompt"
S, D, F, FP = 2048, 512, 1376, 1408
WS_KVR, WS_W1T, WS_W2T, WS_ACT, WS_Y2T, WS_G = 0x0, 0x200000, 0x400000, 0x600000, 0xC00000, 0xE00000
KA = dict(q=0, k=8, v=16, shift_k=24, ssm_k=32, ssm_D=40, x=48, w1=56, b1=64, w2=72, gate_w=80, out=88, dbg=96, ws=104)


class K:
    def __init__(self):
        self.L = []

    def __call__(self, s):
        for line in s.strip("\n").split("\n"):
            self.L.append("    " + line.strip())

    def lbl(self, s):
        self.L.append(s + ":")

    def text(self):
        return "\n".join(self.L) + "\n"


def srd(k, sreg, ptr_sreg, nbytes, off=0):
    if off:
        k(f"s_add_u32 s{sreg}, s{ptr_sreg}, {off:#x}")
        k(f"s_addc_u32 s{sreg+1}, s{ptr_sreg+1}, 0")
    else:
        k(f"s_mov_b32 s{sreg}, s{ptr_sreg}")
        k(f"s_mov_b32 s{sreg+1}, s{ptr_sreg+1}")
    k(f"s_mov_b32 s{sreg+2}, {nbytes:#x}")
    k(f"s_mov_b32 s{sreg+3}, 0x00020000")


STAMPS = False


def stamp(k, i):
    if STAMPS:
        k(f"s_memtime s[{86+2*i}:{87+2*i}]")


def stamp_flush(k, n, slot):
    if not STAMPS:
        return
    k("s_waitcnt lgkmcnt(0)")
    k(f"s_load_dwordx2 s[98:99], s[0:1], {KA['dbg']}")
    k("s_waitcnt lgkmcnt(0)")
    k("s_cmp_lg_u32 s2, 0")
    k(f"s_cbranch_scc1 L_nostamp{slot}")
    k("v_lshrrev_b32 v4, 6, v0")
    k(f"v_lshlrev_b32 v4, 5, v4")
    k(f"v_add_u32 v4, {slot*128}, v4")
    for i in range(1, n):
        k(f"s_sub_u32 s{86+2*i}, s{86+2*i}, s86")
        k(f"v_mov_b32 v5, s{86+2*i}")
        k(f"global_store_dword v4, v5, s[98:99] offset:{4*(i-1)}")
    k.lbl(f"L_nostamp{slot}")


def kernel_header(name):
    return f""".globl {name}
.p2align 8
.type {name},@function
{name}:
"""


def kernel_desc(name, vgprs, sgprs=102, accum=None):
    if accum is None:
        accum = (vgprs + 3) // 4 * 4
    return f""".section .rodata,"a"
.p2align 6
.amdhsa_kernel {name}
  .amdhsa_next_free_vgpr {vgprs}
  .amdhsa_next_free_sgpr {sgprs}
  .amdhsa_accum_offset {accum}
  .amdhsa_group_segment_fixed_size 0
  .amdhsa_kernarg_size 112
  .amdhsa_user_sgpr_count 2
  .amdhsa_user_sgpr_kernarg_segment_ptr 1
  .amdhsa_system_sgpr_workgroup_id_x 1
.end_amdhsa_kernel
.text
"""


PREP_KV_WGS = 256
PREP_GATE_WGS = 128
PREP_W1_WGS = 8 * 43
PREP_W2_WGS = 44 * 8
PREP_WGS = PREP_KV_WGS + PREP_GATE_WGS + PREP_W1_WGS + PREP_W2_WGS


def gen_transpose_role(k, tag, src_srd, src_row_bytes, dst_srd, dst_row_bytes, sr0, sc0, R, C):
    cpr = C // 8
    assert R * cpr == 256
    RS = 2 * R + 16
    lg = cpr.bit_length() - 1
    k(f"v_lshrrev_b32 v1, {lg}, v0")
    k(f"v_and_b32 v2, {cpr-1}, v0         ; chunk")
    k(f"v_add_u32 v3, s{sr0}, v1")
    k(f"s_mov_b32 s40, {src_row_bytes}")
    k(f"v_mul_lo_u32 v3, v3, s40")
    k(f"v_lshlrev_b32 v4, 4, v2")
    k(f"s_lshl_b32 s41, s{sc0}, 1")
    k(f"v_add3_u32 v3, v3, v4, s41")
    k(f"buffer_load_dwordx4 v[8:11], v3, s[{src_srd}:{src_srd+3}], 0 offen")
    k(f"v_mul_u32_u24 v5, {8*RS}, v2")
    k(f"v_lshl_add_u32 v5, v1, 1, v5")
    k("s_waitcnt vmcnt(0)")
    for e in range(8):
        op = "ds_write_b16" if e % 2 == 0 else "ds_write_b16_d16_hi"
        k(f"{op} v5, v{8 + e//2} offset:{e*RS}")
    k("s_waitcnt lgkmcnt(0)")
    k("s_barrier")
    cpd = R // 8
    lg2 = cpd.bit_length() - 1
    k(f"v_lshrrev_b32 v1, {lg2}, v0")
    k(f"v_and_b32 v2, {cpd-1}, v0")
    k(f"v_mul_u32_u24 v5, {RS}, v1")
    k(f"v_lshl_add_u32 v5, v2, 4, v5")
    k("ds_read_b128 v[8:11], v5")
    k(f"v_add_u32 v3, s{sc0}, v1")
    k(f"s_mov_b32 s40, {dst_row_bytes}")
    k(f"v_mul_lo_u32 v3, v3, s40")
    k(f"v_lshlrev_b32 v4, 4, v2")
    k(f"s_lshl_b32 s41, s{sr0}, 1")
    k(f"v_add3_u32 v3, v3, v4, s41")
    k("s_waitcnt lgkmcnt(0)")
    k(f"buffer_store_dwordx4 v[8:11], v3, s[{dst_srd}:{dst_srd+3}], 0 offen")
    k("s_endpgm")


def gen_prep():
    k = K()
    k(f"s_cmp_ge_u32 s2, {PREP_WGS}")
    k("s_cbranch_scc1 L_prep_exit")
    k(f"s_load_dwordx2 s[6:7], s[0:1], {KA['ws']}")
    k(f"s_cmp_ge_u32 s2, {PREP_KV_WGS}")
    k("s_cbranch_scc1 L_prep_gate")
    k(f"s_load_dwordx2 s[4:5], s[0:1], {KA['k']}")
    k(f"s_load_dwordx2 s[24:25], s[0:1], {KA['v']}")
    k(f"s_load_dwordx2 s[26:27], s[0:1], {KA['shift_k']}")
    k("s_lshr_b32 s3, s2, 3")
    k("s_lshl_b32 s3, s3, 6           ; s0 = 64*sblk")
    k("s_and_b32 s28, s2, 7")
    k("s_lshl_b32 s28, s28, 6         ; d0 = 64*dblk")
    k("v_lshrrev_b32 v1, 3, v0        ; r")
    k("v_and_b32 v2, 7, v0            ; c")
    k("v_lshlrev_b32 v3, 4, v2")
    k("s_lshl_b32 s29, s28, 1")
    k("v_add_u32 v3, s29, v3          ; colb = (d0+8c)*2")
    k("s_waitcnt lgkmcnt(0)")
    srd(k, 8, 4, S * D * 2)
    srd(k, 12, 24, S * D * 2)
    srd(k, 16, 26, D * 8)
    srd(k, 20, 6, D * S * 2, WS_KVR)
    k("v_lshlrev_b32 v4, 2, v3")
    for i in range(4):
        k(f"buffer_load_dwordx4 v[{16+4*i}:{19+4*i}], v4, s[16:19], 0 offen offset:{16*i}")
    RS = 144
    k(f"v_mul_u32_u24 v9, {8*RS}, v2")
    k("s_waitcnt vmcnt(0)")
    for e in range(8):
        k(f"v_lshlrev_b32 v{32+4*e+0}, 16, v{16+2*e}")
        k(f"v_and_b32 v{32+4*e+1}, 0xffff0000, v{16+2*e}")
        k(f"v_lshlrev_b32 v{32+4*e+2}, 16, v{17+2*e}")
        k(f"v_and_b32 v{32+4*e+3}, 0xffff0000, v{17+2*e}")
    for p in range(2):
        kb = 64 + 36 * p
        k(f"v_add_u32 v5, s3, v1")
        k(f"v_add_u32 v5, {32*p-3}, v5")
        k("v_lshlrev_b32 v5, 10, v5")
        k("v_add_u32 v5, v5, v3")
        k("v_add_u32 v6, 0x400, v5")
        k("v_add_u32 v7, 0x800, v5")
        k("v_add_u32 v8, 0xc00, v5")
        k(f"buffer_load_dwordx4 v[{kb}:{kb+3}], v5, s[8:11], 0 offen")
        k(f"buffer_load_dwordx4 v[{kb+4}:{kb+7}], v6, s[8:11], 0 offen")
        k(f"buffer_load_dwordx4 v[{kb+8}:{kb+11}], v7, s[8:11], 0 offen")
        k(f"buffer_load_dwordx4 v[{kb+12}:{kb+15}], v8, s[8:11], 0 offen")
        k(f"buffer_load_dwordx4 v[{kb+16}:{kb+19}], v8, s[12:15], 0 offen")
    for p in range(2):
        kb = 64 + 36 * p
        k(f"s_waitcnt vmcnt({5*(1-p)})")
        for i in range(4):
            e0, e1 = 2 * i, 2 * i + 1
            for j in range(4):
                k(f"v_lshlrev_b32 v84, 16, v{kb+4*j+i}")
                k(f"v_and_b32 v85, 0xffff0000, v{kb+4*j+i}")
                k(f"v_mul_f32 v84, v84, v{32+4*e0+3-j}")
                k(f"v_mul_f32 v85, v85, v{32+4*e1+3-j}")
                k("v_cvt_pk_bf16_f32 v86, v84, v85")
                if j == 0:
                    k("v_lshlrev_b32 v87, 16, v86")
                    k("v_and_b32 v88, 0xffff0000, v86")
                else:
                    k("v_lshlrev_b32 v84, 16, v86")
                    k("v_and_b32 v85, 0xffff0000, v86")
                    k("v_add_f32 v87, v87, v84")
                    k("v_add_f32 v88, v88, v85")
                    k("v_cvt_pk_bf16_f32 v86, v87, v88")
                    k("v_lshlrev_b32 v87, 16, v86")
                    k("v_and_b32 v88, 0xffff0000, v86")
            k(f"v_lshlrev_b32 v84, 16, v{kb+16+i}")
            k(f"v_and_b32 v85, 0xffff0000, v{kb+16+i}")
            k("v_mul_f32 v87, v87, v84")
            k("v_mul_f32 v88, v88, v85")
            k(f"v_cvt_pk_bf16_f32 v{90+i}, v87, v88")
        k(f"v_sub_u32 v10, {63-32*p}, v1")
        k("v_lshl_add_u32 v10, v10, 1, v9")
        for e in range(8):
            op = "ds_write_b16" if e % 2 == 0 else "ds_write_b16_d16_hi"
            k(f"{op} v10, v{90+e//2} offset:{e*RS}")
    k("s_waitcnt lgkmcnt(0)")
    k("s_barrier")
    k("v_lshrrev_b32 v1, 2, v0")
    k("v_and_b32 v2, 3, v0")
    k(f"v_mul_u32_u24 v5, {RS}, v1")
    k("v_lshl_add_u32 v5, v2, 5, v5")
    k("ds_read_b128 v[16:19], v5")
    k("ds_read_b128 v[20:23], v5 offset:16")
    k("v_add_u32 v3, s28, v1")
    k("v_lshlrev_b32 v3, 12, v3")
    k("v_lshl_add_u32 v3, v2, 5, v3")
    k("s_sub_u32 s29, 1984, s3")
    k("s_lshl_b32 s29, s29, 1")
    k("v_add_u32 v3, s29, v3")
    k("s_waitcnt lgkmcnt(0)")
    k("buffer_store_dwordx4 v[16:19], v3, s[20:23], 0 offen")
    k("buffer_store_dwordx4 v[20:23], v3, s[20:23], 0 offen offset:16")
    k("s_endpgm")

    k.lbl("L_prep_gate")
    k(f"s_cmp_ge_u32 s2, {PREP_KV_WGS + PREP_GATE_WGS}")
    k("s_cbranch_scc1 L_prep_w1")
    k(f"s_load_dwordx2 s[4:5], s[0:1], {KA['q']}")
    k(f"s_load_dwordx2 s[24:25], s[0:1], {KA['gate_w']}")
    k(f"s_sub_u32 s3, s2, {PREP_KV_WGS}")
    k("s_lshl_b32 s3, s3, 4")
    k("v_lshrrev_b32 v1, 6, v0        ; wave")
    k("v_and_b32 v2, 63, v0           ; lane")
    k("v_lshlrev_b32 v3, 2, v1")
    k("v_add_u32 v3, s3, v3")
    k("v_lshlrev_b32 v4, 10, v3")
    k("v_lshl_add_u32 v4, v2, 4, v4")
    k("v_lshlrev_b32 v5, 4, v2")
    k("s_waitcnt lgkmcnt(0)")
    srd(k, 8, 4, S * D * 2)
    srd(k, 12, 24, D * 2)
    srd(k, 20, 6, S * 4, WS_G)
    k("buffer_load_dwordx4 v[12:15], v5, s[12:15], 0 offen")
    for rr in range(4):
        k(f"buffer_load_dwordx4 v[{24+4*rr}:{27+4*rr}], v4, s[8:11], 0 offen offset:{1024*rr}")
    k("v_lshlrev_b32 v3, 2, v3")
    k("v_cmp_eq_u32 vcc, 0, v2")
    for rr in range(4):
        k(f"s_waitcnt vmcnt({3-rr})")
        for i in range(4):
            k(f"v_lshlrev_b32 v16, 16, v{24+4*rr+i}")
            k(f"v_and_b32 v17, 0xffff0000, v{24+4*rr+i}")
            k(f"v_lshlrev_b32 v18, 16, v{12+i}")
            k(f"v_and_b32 v19, 0xffff0000, v{12+i}")
            k("v_mul_f32 v16, v16, v18")
            k("v_mul_f32 v17, v17, v19")
            k("v_cvt_pk_bf16_f32 v16, v16, v17")
            k("v_lshlrev_b32 v17, 16, v16")
            k("v_and_b32 v16, 0xffff0000, v16")
            if i == 0:
                k("v_add_f32 v20, v16, v17")
            else:
                k("v_add_f32 v20, v20, v17")
                k("v_add_f32 v20, v20, v16")
        k("s_nop 1")
        k("v_add_f32_dpp v20, v20, v20 quad_perm:[1,0,3,2] row_mask:0xf bank_mask:0xf")
        k("s_nop 1")
        k("v_add_f32_dpp v20, v20, v20 quad_perm:[2,3,0,1] row_mask:0xf bank_mask:0xf")
        k("s_nop 1")
        k("v_add_f32_dpp v20, v20, v20 row_half_mirror row_mask:0xf bank_mask:0xf")
        k("s_nop 1")
        k("v_add_f32_dpp v20, v20, v20 row_mirror row_mask:0xf bank_mask:0xf")
        k("s_nop 1")
        k("v_readlane_b32 s30, v20, 0")
        k("v_readlane_b32 s31, v20, 16")
        k("v_readlane_b32 s32, v20, 32")
        k("v_readlane_b32 s33, v20, 48")
        k("s_nop 3")
        k("v_mov_b32 v21, s30")
        k("v_add_f32 v21, s31, v21")
        k("v_add_f32 v21, s32, v21")
        k("v_add_f32 v21, s33, v21")
        k("v_cvt_pk_bf16_f32 v21, v21, v21")
        k("v_lshlrev_b32 v21, 16, v21")
        k("v_mul_f32 v21, 0xbfb8aa3b, v21")
        k("v_exp_f32 v21, v21")
        k("s_nop 0")
        k("v_add_f32 v21, 1.0, v21")
        k("v_rcp_f32 v21, v21")
        k("s_nop 0")
        k("v_cvt_pk_bf16_f32 v21, v21, v21")
        k(f"v_lshlrev_b32 v{40+rr}, 16, v21")
    k("s_and_saveexec_b64 s[34:35], vcc")
    for rr in range(4):
        k(f"buffer_store_dword v{40+rr}, v3, s[20:23], 0 offen offset:{4*rr}")
    k("s_endpgm")

    k.lbl("L_prep_w1")
    k(f"s_cmp_ge_u32 s2, {PREP_KV_WGS + PREP_GATE_WGS + PREP_W1_WGS}")
    k("s_cbranch_scc1 L_prep_w2")
    k(f"s_load_dwordx2 s[4:5], s[0:1], {KA['w1']}")
    k(f"s_sub_u32 s3, s2, {PREP_KV_WGS + PREP_GATE_WGS}")
    k("s_and_b32 s28, s3, 7")
    k("s_lshl_b32 s28, s28, 6      ; k0")
    k("s_lshr_b32 s29, s3, 3")
    k("s_lshl_b32 s30, s29, 5      ; f0")
    k("s_waitcnt lgkmcnt(0)")
    srd(k, 8, 4, D * F * 2)
    srd(k, 20, 6, F * D * 2, WS_W1T)
    gen_transpose_role(k, "w1", 8, F * 2, 20, D * 2, 28, 30, 64, 32)

    k.lbl("L_prep_w2")
    k(f"s_load_dwordx2 s[4:5], s[0:1], {KA['w2']}")
    k(f"s_sub_u32 s3, s2, {PREP_KV_WGS + PREP_GATE_WGS + PREP_W1_WGS}")
    k("s_and_b32 s28, s3, 7")
    k("s_lshl_b32 s28, s28, 6      ; d0")
    k("s_lshr_b32 s29, s3, 3")
    k("s_lshl_b32 s30, s29, 5      ; f0")
    k("s_waitcnt lgkmcnt(0)")
    srd(k, 8, 4, F * D * 2)
    srd(k, 20, 6, D * FP * 2, WS_W2T)
    gen_transpose_role(k, "w2", 8, D * 2, 20, FP * 2, 30, 28, 32, 64)
    k.lbl("L_prep_exit")
    k("s_endpgm")
    return k.text()


def build(kernels):
    hdr = [f"; {NAME}: generated by dev/gen.py"]
    for (nm, body, vg, grid, block, lds) in kernels:
        hdr.append(f"; @launch kernel={nm} grid=({grid},1,1) block=({block},1,1) lds={lds}")
    out = "\n".join(hdr) + "\n"
    out += '.amdgcn_target "amdgcn-amd-amdhsa--gfx950"\n.text\n'
    for (nm, body, vg, grid, block, lds) in kernels:
        out += kernel_header(nm) + body
    for (nm, body, vg, grid, block, lds) in kernels:
        out += kernel_desc(nm, vg)
    return out


if __name__ == "__main__":
    kernels = [
        ("prep_kernel", gen_prep(), 96, PREP_WGS, 256, 16384),
    ]
    txt = build(kernels)
    path = sys.argv[1] if len(sys.argv) > 1 else f"cdna_kernels/{NAME}.s"
    open(path, "w").write(txt)
    print("wrote", path, len(txt), "bytes")
```

```python
from gen import *

LOG2E = 0x3fb8aa3b


class GemmCfg:
    def __init__(self, name, MT, NT, KTOT, RBW, RBA, NST, mts_per_wave, wave_split):
        self.name = name
        self.MT, self.NT, self.KTOT, self.RBW, self.RBA, self.NST = MT, NT, KTOT, RBW, RBA, NST
        self.mts = mts_per_wave
        self.wave_split = wave_split
        self.NI = (MT + NT) // 8
        self.NIW = self.NI // 4
        self.STAGE = (MT + NT) * 128
        self.NSTEP = KTOT // 64
        self.LDS = self.STAGE * NST


G1 = GemmCfg("g1", 96, 128, 512, 1024, 1024, 5, 3, "n4")
G2 = GemmCfg("g2", 64, 64, FP, FP * 2, FP * 2, 6, 1, "m2n2")

ACC = 64
FRAG = 16
VRA = 2
VRB = 6
VA_T = 48
VOW, VOA = 10, 11
VLANE, VWAVE = 12, 13


def gemm_mainloop(k, c, sW, sA, s_soffW, s_soffA, s_wave, pre_epilogue=None):
    nW = c.MT // 32
    nA = c.NT // 32
    k(f"v_and_b32 v{VLANE}, 63, v0")
    k(f"v_lshrrev_b32 v{VWAVE}, 6, v0")
    k(f"v_lshrrev_b32 v14, 3, v{VLANE}")
    k(f"v_lshl_add_u32 v14, v{VWAVE}, 3, v14")
    k(f"v_lshrrev_b32 v15, 4, v{VLANE}")
    k(f"v_lshl_add_u32 v15, v{VWAVE}, 2, v15")
    k(f"v_xor_b32 v15, v15, v{VLANE}")
    k(f"v_and_b32 v15, 7, v15")
    k(f"s_mov_b32 s60, {c.RBW}")
    k(f"v_mul_lo_u32 v{VOW}, v14, s60")
    k(f"v_lshl_add_u32 v{VOW}, v15, 4, v{VOW}")
    k(f"s_mov_b32 s60, {c.RBA}")
    k(f"v_mul_lo_u32 v{VOA}, v14, s60")
    k(f"v_lshl_add_u32 v{VOA}, v15, 4, v{VOA}")
    k(f"v_and_b32 v14, 31, v{VLANE}")
    k(f"v_lshrrev_b32 v15, 5, v{VLANE}")
    k("v_lshrrev_b32 v56, 1, v14")
    k("v_and_b32 v56, 7, v56                           ; swizzle")
    k("v_lshlrev_b32 v57, 7, v14                       ; row*128")
    for t in range(4):
        k(f"v_add_u32 v58, {2*t}, v15")
        k("v_xor_b32 v58, v58, v56")
        k(f"v_lshl_add_u32 v{VRA+t}, v58, 4, v57")
    if c.wave_split == 'n4':
        k(f"v_lshlrev_b32 v58, 12, v{VWAVE}")
        k(f"v_add_u32 v58, {c.MT*128}, v58")
        for t in range(4):
            k(f"v_add_u32 v{VRB+t}, v{VRA+t}, v58")
    else:
        k(f"v_lshrrev_b32 v58, 1, v{VWAVE}")
        k("v_lshlrev_b32 v58, 12, v58")
        k(f"v_add_u32 v58, {c.MT*128}, v58")
        for t in range(4):
            k(f"v_add_u32 v{VRB+t}, v{VRA+t}, v58")
        k(f"v_and_b32 v58, 1, v{VWAVE}")
        k("v_lshlrev_b32 v58, 12, v58")
        for t in range(4):
            k(f"v_add_u32 v{VRA+t}, v{VRA+t}, v58")
    for i in range(16 * c.mts):
        k(f"v_mov_b32 v{ACC+i}, 0")
    k(f"s_lshl_b32 s61, {s_wave}, 10")

    def dma_stage(st):
        slot = st % c.NST
        for i in range(c.NIW):
            k(f"s_add_u32 s62, s61, {slot*c.STAGE + i*4096}")
            k("s_mov_b32 m0, s62")
            if i < nW:
                k(f"buffer_load_dwordx4 v{VOW}, s[{sW}:{sW+3}], s{s_soffW+i} offen lds")
            else:
                k(f"buffer_load_dwordx4 v{VOA}, s[{sA}:{sA+3}], s{s_soffA+i-nW} offen lds")
        k(f"v_add_u32 v{VOW}, 0x80, v{VOW}")
        k(f"v_add_u32 v{VOA}, 0x80, v{VOA}")

    nfr = c.mts + 1
    def frag_reads(t, buf):
        base = FRAG + buf * nfr * 4
        for mt in range(c.mts):
            k(f"ds_read_b128 v[{base+4*mt}:{base+4*mt+3}], v{VA_T+t} offset:{mt*4096}")
        k(f"ds_read_b128 v[{base+4*c.mts}:{base+4*c.mts+3}], v{VA_T+4+t}")

    def mfmas(buf):
        base = FRAG + buf * nfr * 4
        for mt in range(c.mts):
            a = ACC + 16 * mt
            k(f"v_mfma_f32_32x32x16_bf16 v[{a}:{a+15}], v[{base+4*mt}:{base+4*mt+3}], v[{base+4*c.mts}:{base+4*c.mts+3}], v[{a}:{a+15}]")

    stamp(k, 1)
    if pre_epilogue is not None:
        pre_epilogue()
    for st in range(min(c.NST - 1, c.NSTEP)):
        dma_stage(st)
    inflight_after0 = min(c.NST - 1, c.NSTEP) - 1
    k(f"s_waitcnt vmcnt({inflight_after0*c.NIW})")
    k("s_barrier")
    stamp(k, 2)

    def rd(step, t):
        slot = step % c.NST
        buf = (4 * step + t) % 2
        k(f"v_add_u32 v{VA_T}, {slot*c.STAGE}, v{VRA+t}")
        k(f"v_add_u32 v{VA_T+1}, {slot*c.STAGE}, v{VRB+t}")
        base = FRAG + buf * nfr * 4
        for mt in range(c.mts):
            k(f"ds_read_b128 v[{base+4*mt}:{base+4*mt+3}], v{VA_T} offset:{mt*4096}")
        k(f"ds_read_b128 v[{base+4*c.mts}:{base+4*c.mts+3}], v{VA_T+1}")

    if c.NST == 2:
        for step in range(c.NSTEP):
            if step + 1 < c.NSTEP:
                dma_stage(step + 1)
            rd(step, 0)
            for t in range(4):
                if t < 3:
                    rd(step, t + 1)
                    k(f"s_waitcnt lgkmcnt({nfr})")
                else:
                    k("s_waitcnt lgkmcnt(0)")
                mfmas((4 * step + t) % 2)
            if step + 1 < c.NSTEP:
                k("s_waitcnt vmcnt(0)")
                k("s_barrier")
        return
    rd(0, 0)
    for step in range(c.NSTEP):
        for t in range(4):
            nxt = None
            if t < 3:
                nxt = (step, t + 1)
            elif step + 1 < c.NSTEP:
                nxt = (step + 1, 0)
            if t == 2 and step + 1 < c.NSTEP:
                last_issued = min(step + c.NST - 2, c.NSTEP - 1)
                n_after = last_issued - (step + 1)
                k(f"s_waitcnt vmcnt({n_after*c.NIW})")
                k("s_barrier")
                if step + c.NST - 1 < c.NSTEP:
                    dma_stage(step + c.NST - 1)
            if nxt is not None:
                rd(*nxt)
                k(f"s_waitcnt lgkmcnt({nfr})")
            else:
                k("s_waitcnt lgkmcnt(0)")
            mfmas((4 * step + t) % 2)


def mish4(k, a, bpair, out0, out1, t):
    k(f"v_cvt_pk_bf16_f32 v{t}, v{a}, v{a+1}")
    k(f"v_cvt_pk_bf16_f32 v{t+1}, v{a+2}, v{a+3}")
    k(f"v_lshlrev_b32 v{a}, 16, v{t}")
    k(f"v_and_b32 v{a+1}, 0xffff0000, v{t}")
    k(f"v_lshlrev_b32 v{a+2}, 16, v{t+1}")
    k(f"v_and_b32 v{a+3}, 0xffff0000, v{t+1}")
    k(f"v_lshlrev_b32 v{t}, 16, v{bpair}")
    k(f"v_and_b32 v{t+1}, 0xffff0000, v{bpair}")
    k(f"v_lshlrev_b32 v{t+2}, 16, v{bpair+1}")
    k(f"v_and_b32 v{t+3}, 0xffff0000, v{bpair+1}")
    for r in range(4):
        k(f"v_add_f32 v{a+r}, v{a+r}, v{t+r}")
    k(f"v_cvt_pk_bf16_f32 v{t}, v{a}, v{a+1}")
    k(f"v_cvt_pk_bf16_f32 v{t+1}, v{a+2}, v{a+3}")
    k(f"v_lshlrev_b32 v{a}, 16, v{t}")
    k(f"v_and_b32 v{a+1}, 0xffff0000, v{t}")
    k(f"v_lshlrev_b32 v{a+2}, 16, v{t+1}")
    k(f"v_and_b32 v{a+3}, 0xffff0000, v{t+1}")
    for r in range(4):
        k(f"v_mul_f32 v{t+r}, {LOG2E:#x}, v{a+r}")
    for r in range(4):
        k(f"v_min_f32 v{t+r}, 0x42200000, v{t+r}")
    for r in range(4):
        k(f"v_exp_f32 v{t+r}, v{t+r}")
    k("s_nop 0")
    for r in range(4):
        k(f"v_add_f32 v{t+4+r}, 2.0, v{t+r}")
    for r in range(4):
        k(f"v_mul_f32 v{t+r}, v{t+r}, v{t+4+r}")
    for r in range(4):
        k(f"v_add_f32 v{t+4+r}, 2.0, v{t+r}")
    for r in range(4):
        k(f"v_rcp_f32 v{t+4+r}, v{t+4+r}")
    k("s_nop 0")
    for r in range(4):
        k(f"v_mul_f32 v{t+r}, v{t+r}, v{t+4+r}")
    for r in range(4):
        k(f"v_mul_f32 v{t+r}, v{t+r}, v{a+r}")
    k(f"v_cvt_pk_bf16_f32 v{out0}, v{t}, v{t+1}")
    k(f"v_cvt_pk_bf16_f32 v{out1}, v{t+2}, v{t+3}")


GEMM1_WGS = 15 * 16
GEMM2_WGS = 256


def gen_gemm1(k, wg="s2"):
    c = G1
    stamp(k, 0)
    k(f"s_load_dwordx2 s[4:5], s[0:1], {KA['q']}")
    k(f"s_load_dwordx2 s[6:7], s[0:1], {KA['ws']}")
    k(f"s_load_dwordx2 s[24:25], s[0:1], {KA['b1']}")
    k(f"s_and_b32 s26, {wg}, 15          ; sb")
    k(f"s_lshr_b32 s27, {wg}, 4          ; fb")
    k("v_lshrrev_b32 v1, 6, v0")
    k("s_nop 0")
    k("v_readfirstlane_b32 s28, v1      ; wave")
    k("s_mul_i32 s29, s27, 96           ; f0")
    k("s_lshl_b32 s30, s26, 7           ; s0")
    for i in range(3):
        k(f"s_add_u32 s{64+i}, s29, {32*i}")
        k(f"s_lshl_b32 s{64+i}, s{64+i}, 10")
    for i in range(4):
        k(f"s_add_u32 s{68+i}, s30, {32*i}")
        k(f"s_lshl_b32 s{68+i}, s{68+i}, 10")
    k("s_waitcnt lgkmcnt(0)")
    srd(k, 8, 6, F * D * 2, WS_W1T)
    srd(k, 12, 4, S * D * 2)
    srd(k, 16, 24, F * 2)
    srd(k, 20, 6, S * FP * 2, WS_ACT)
    gemm_mainloop(k, c, 8, 12, 64, 68, "s28")
    stamp(k, 3)
    k(f"v_and_b32 v14, 31, v{VLANE}")
    k(f"v_lshrrev_b32 v15, 5, v{VLANE}")
    k(f"v_lshl_add_u32 v14, v{VWAVE}, 5, v14")
    k("v_add_u32 v14, s30, v14                 ; s")
    k(f"s_mov_b32 s60, {FP*2}")
    k("v_mul_lo_u32 v14, v14, s60")
    k("s_lshl_b32 s31, s29, 1")
    k("v_lshl_add_u32 v15, v15, 3, s31         ; (f0+4half)*2")
    k("v_add_u32 v14, v14, v15")
    for mt in range(3):
        for g in range(4):
            k(f"buffer_load_dwordx2 v[{16+8*mt+2*g}:{17+8*mt+2*g}], v15, s[16:19], 0 offen offset:{64*mt+16*g}")
    k("s_waitcnt vmcnt(0)")
    for mt in range(3):
        if mt == 2:
            k("s_cmp_eq_u32 s27, 14")
            k("s_cbranch_scc1 L_g1_done")
        for g in range(4):
            mish4(k, ACC + 16 * mt + 4 * g, 16 + 8 * mt + 2 * g, 2, 3, 40)
            k(f"buffer_store_dwordx2 v[2:3], v14, s[20:23], 0 offen offset:{64*mt+16*g}")
            k("s_nop 1")
    k.lbl("L_g1_done")
    stamp(k, 4)
    stamp_flush(k, 5, 0)
    k("s_endpgm")


def gen_gemm2(k, wg="s2"):
    c = G2
    stamp(k, 0)
    k(f"s_load_dwordx2 s[4:5], s[0:1], {KA['q']}")
    k(f"s_load_dwordx2 s[6:7], s[0:1], {KA['ws']}")
    k(f"s_load_dwordx2 s[24:25], s[0:1], {KA['out']}")
    k(f"s_and_b32 s26, {wg}, 31          ; sb")
    k(f"s_lshr_b32 s27, {wg}, 5          ; db")
    k("v_lshrrev_b32 v1, 6, v0")
    k("s_nop 0")
    k("v_readfirstlane_b32 s28, v1      ; wave")
    k("s_lshl_b32 s29, s27, 6           ; d0")
    k("s_lshl_b32 s30, s26, 6           ; s0")
    k(f"s_mov_b32 s60, {FP*2}")
    for i in range(2):
        k(f"s_add_u32 s{64+i}, s29, {32*i}")
        k(f"s_mul_i32 s{64+i}, s{64+i}, s60")
        k(f"s_add_u32 s{68+i}, s30, {32*i}")
        k(f"s_mul_i32 s{68+i}, s{68+i}, s60")
    k("s_waitcnt lgkmcnt(0)")
    srd(k, 8, 6, D * FP * 2, WS_W2T)
    srd(k, 12, 6, S * FP * 2, WS_ACT)
    srd(k, 16, 6, D * S * 2, WS_Y2T)
    srd(k, 20, 4, S * D * 2)
    srd(k, 72, 24, S * D * 2)
    srd(k, 76, 6, S * 4, WS_G)
    gemm_mainloop(k, c, 8, 12, 64, 68, "s28")
    stamp(k, 3)
    k(f"v_and_b32 v14, 31, v{VLANE}")
    k(f"v_lshrrev_b32 v15, 5, v{VLANE}")
    k(f"v_lshrrev_b32 v16, 1, v{VWAVE}")
    k("v_lshl_add_u32 v14, v16, 5, v14")
    k("v_add_u32 v14, s30, v14                 ; s")
    k(f"v_and_b32 v16, 1, v{VWAVE}")
    k("v_lshlrev_b32 v16, 5, v16")
    k("v_lshl_add_u32 v16, v15, 2, v16")
    k("v_add_u32 v16, s29, v16                 ; d (g=0,r=0)")
    k("v_lshlrev_b32 v17, 2, v14")
    k("buffer_load_dword v18, v17, s[76:79], 0 offen      ; g")
    k("v_lshlrev_b32 v19, 12, v16")
    k("v_lshl_add_u32 v19, v14, 1, v19")
    k("v_lshlrev_b32 v20, 10, v14")
    k("v_lshl_add_u32 v20, v16, 1, v20")
    for g in range(4):
        for r in range(4):
            k(f"s_mov_b32 s62, {(8*g+r)*4096}")
            k(f"buffer_load_ushort v{24+4*g+r}, v19, s[16:19], s62 offen")
        k(f"buffer_load_dwordx2 v[{40+2*g}:{41+2*g}], v20, s[20:23], 0 offen offset:{16*g}")
    k("s_waitcnt vmcnt(0)")
    k("v_sub_f32 v21, 1.0, v18")
    k("v_cvt_pk_bf16_f32 v21, v21, v21")
    k("v_lshlrev_b32 v21, 16, v21              ; 1-g (bf16)")
    for g in range(4):
        a = ACC + 4 * g
        k(f"v_cvt_pk_bf16_f32 v2, v{a}, v{a+1}")
        k(f"v_cvt_pk_bf16_f32 v3, v{a+2}, v{a+3}")
        k(f"v_lshlrev_b32 v{a}, 16, v2")
        k(f"v_and_b32 v{a+1}, 0xffff0000, v2")
        k(f"v_lshlrev_b32 v{a+2}, 16, v3")
        k(f"v_and_b32 v{a+3}, 0xffff0000, v3")
        for r in range(4):
            k(f"v_mul_f32 v{a+r}, v{a+r}, v21")
        k(f"v_cvt_pk_bf16_f32 v2, v{a}, v{a+1}")
        k(f"v_cvt_pk_bf16_f32 v3, v{a+2}, v{a+3}")
        k(f"v_lshlrev_b32 v{a}, 16, v2")
        k(f"v_and_b32 v{a+1}, 0xffff0000, v2")
        k(f"v_lshlrev_b32 v{a+2}, 16, v3")
        k(f"v_and_b32 v{a+3}, 0xffff0000, v3")
        y = 24 + 4 * g
        qq = 40 + 2 * g
        k(f"v_lshlrev_b32 v4, 16, v{qq}")
        k(f"v_and_b32 v5, 0xffff0000, v{qq}")
        k(f"v_lshlrev_b32 v6, 16, v{qq+1}")
        k(f"v_and_b32 v7, 0xffff0000, v{qq+1}")
        for r in range(4):
            k(f"v_lshlrev_b32 v{y+r}, 16, v{y+r}")
            k(f"v_mul_f32 v{4+r}, v{4+r}, v{y+r}")
        k("v_cvt_pk_bf16_f32 v2, v4, v5")
        k("v_cvt_pk_bf16_f32 v3, v6, v7")
        k("v_lshlrev_b32 v4, 16, v2")
        k("v_and_b32 v5, 0xffff0000, v2")
        k("v_lshlrev_b32 v6, 16, v3")
        k("v_and_b32 v7, 0xffff0000, v3")
        for r in range(4):
            k(f"v_mul_f32 v{4+r}, v{4+r}, v18")
        k("v_cvt_pk_bf16_f32 v2, v4, v5")
        k("v_cvt_pk_bf16_f32 v3, v6, v7")
        k("v_lshlrev_b32 v4, 16, v2")
        k("v_and_b32 v5, 0xffff0000, v2")
        k("v_lshlrev_b32 v6, 16, v3")
        k("v_and_b32 v7, 0xffff0000, v3")
        for r in range(4):
            k(f"v_add_f32 v{4+r}, v{4+r}, v{a+r}")
        k("v_cvt_pk_bf16_f32 v2, v4, v5")
        k("v_cvt_pk_bf16_f32 v3, v6, v7")
        k(f"buffer_store_dwordx2 v[2:3], v20, s[72:75], 0 offen offset:{16*g}")
        k("s_nop 1")
    stamp(k, 4)
    stamp_flush(k, 5, 1)
    k("s_endpgm")


def gen_gemm1_kernel():
    k = K()
    k(f"s_cmp_ge_u32 s2, {GEMM1_WGS}")
    k("s_cbranch_scc1 L_g1_exit")
    gen_gemm1(k)
    k.lbl("L_g1_exit")
    k("s_endpgm")
    return k.text()


def gen_gemm2_kernel():
    k = K()
    k(f"s_cmp_ge_u32 s2, {GEMM2_WGS}")
    k("s_cbranch_scc1 L_g2_exit")
    gen_gemm2(k)
    k.lbl("L_g2_exit")
    k("s_endpgm")
    return k.text()
```
